```python
import torch

def _softmax(x, axis=-1):
    return torch.softmax(x, dim=axis)
def _gelu(x):
    return torch.nn.functional.gelu(x, approximate="tanh")
def _silu(x):
    return torch.nn.functional.silu(x)
def _sigmoid(x):
    return torch.sigmoid(x)
def _layernorm(x, axis=-1, eps=1e-5):
    m = x.mean(dim=axis, keepdim=True)
    v = x.var(dim=axis, keepdim=True, unbiased=False)
    return (x - m) / torch.sqrt(v + eps)
def _scatter_add(tgt, idx, src, axis=0):
    return tgt.clone().index_add_(axis, idx, src)
def _segment_sum(src, seg, n):
    out = torch.zeros((n,) + src.shape[1:], dtype=src.dtype)
    return out.index_add_(0, seg, src)
def _pad(x, pw):
    flat = tuple(v for pair in reversed(pw) for v in pair)
    return torch.nn.functional.pad(x, flat)

kernel_name = 'concat_heads__gqa_block_cached__gqa_block_cached__near_ridge'

def setup_inputs():

    _w = (lambda a: (lambda t: t.to(torch.bfloat16) if t.is_floating_point() else t)(torch.as_tensor(a)))
    def _A_setup():
        B, Sq, D = 8, 144, 512
        Hq, Hkv, Sk, Dh = 32, 32, 1024, 128
        assert Hq % Hkv == 0, (Hq, Hkv)
        return {
            "x": _w((lambda *s: torch.randn(*s, dtype=torch.bfloat16) * 0.8)(B, Sq, D)),
            "k_cache": _w((lambda *s: torch.randn(*s, dtype=torch.bfloat16) * 0.8)(B, Hkv, Sk, Dh)),
            "v_cache": _w((lambda *s: torch.randn(*s, dtype=torch.bfloat16) * 0.05)(B, Hkv, Sk, Dh)),
            "wq": _w((lambda *s: torch.randn(*s, dtype=torch.bfloat16) * 0.8)(D, Hq * Dh) * (D ** -0.5)),
            "wo": _w((lambda *s: torch.randn(*s, dtype=torch.bfloat16) * 0.05)(Hq * Dh, D) * ((Hq * Dh) ** -0.5)),
        }
    _A_in = _A_setup()

    def _B_setup():
        B, Sq, D = 8, 144, 512
        Hq, Hkv, Sk, Dh = 32, 32, 1024, 128
        assert Hq % Hkv == 0, (Hq, Hkv)
        return {
            "x": _w((lambda *s: torch.randn(*s, dtype=torch.bfloat16) * 0.8)(B, Sq, D)),
            "k_cache": _w((lambda *s: torch.randn(*s, dtype=torch.bfloat16) * 0.8)(B, Hkv, Sk, Dh)),
            "v_cache": _w((lambda *s: torch.randn(*s, dtype=torch.bfloat16) * 0.05)(B, Hkv, Sk, Dh)),
            "wq": _w((lambda *s: torch.randn(*s, dtype=torch.bfloat16) * 0.8)(D, Hq * Dh) * (D ** -0.5)),
            "wo": _w((lambda *s: torch.randn(*s, dtype=torch.bfloat16) * 0.05)(Hq * Dh, D) * ((Hq * Dh) ** -0.5)),
        }
    _B_in = _B_setup()

    return {
        "A_x": _A_in["x"],
        "A_k_cache": _A_in["k_cache"],
        "A_v_cache": _A_in["v_cache"],
        "A_wq": _A_in["wq"],
        "A_wo": _A_in["wo"],
        "B_x": _B_in["x"],
        "B_k_cache": _B_in["k_cache"],
        "B_v_cache": _B_in["v_cache"],
        "B_wq": _B_in["wq"],
        "B_wo": _B_in["wo"],
    }

def reference(A_x, A_k_cache, A_v_cache, A_wq, A_wo, B_x, B_k_cache, B_v_cache, B_wq, B_wo):
    def _A_ref(x, k_cache, v_cache, wq, wo):
        B, Sq, D = x.shape
        Hq, Dh = 32, 128
        Hkv = k_cache.shape[1]
        rep = Hq // Hkv
        q = (lambda x, *d: x.permute(*d))((x @ wq).reshape(B, Sq, Hq, Dh), 0, 2, 1, 3)
        k = (lambda x, n, axis: torch.repeat_interleave(x, n, dim=axis))(k_cache, rep, axis=1)
        v = (lambda x, n, axis: torch.repeat_interleave(x, n, dim=axis))(v_cache, rep, axis=1)
        scores = torch.einsum("bhqd,bhkd->bhqk", q, k) * (Dh ** -0.5)
        p = _softmax(scores, axis=-1)
        o = torch.einsum("bhqk,bhkd->bhqd", p, v)
        return (lambda x, *d: x.permute(*d))(o, 0, 2, 1, 3).reshape(B, Sq, Hq * Dh) @ wo

    def _B_ref(x, k_cache, v_cache, wq, wo):
        B, Sq, D = x.shape
        Hq, Dh = 32, 128
        Hkv = k_cache.shape[1]
        rep = Hq // Hkv
        q = (lambda x, *d: x.permute(*d))((x @ wq).reshape(B, Sq, Hq, Dh), 0, 2, 1, 3)
        k = (lambda x, n, axis: torch.repeat_interleave(x, n, dim=axis))(k_cache, rep, axis=1)
        v = (lambda x, n, axis: torch.repeat_interleave(x, n, dim=axis))(v_cache, rep, axis=1)
        scores = torch.einsum("bhqd,bhkd->bhqk", q, k) * (Dh ** -0.5)
        p = _softmax(scores, axis=-1)
        o = torch.einsum("bhqk,bhkd->bhqd", p, v)
        return (lambda x, *d: x.permute(*d))(o, 0, 2, 1, 3).reshape(B, Sq, Hq * Dh) @ wo

    a = _A_ref(A_x, A_k_cache, A_v_cache, A_wq, A_wo)
    b = _B_ref(B_x, B_k_cache, B_v_cache, B_wq, B_wo)
    return torch.concatenate([a, b], axis=-1)
```

```python
class R:
    def __init__(s, f, n, c=1): s.f, s.n, s.c = f, n, c
    def __str__(s):
        return f"{s.f}{s.n}" if s.c == 1 else f"{s.f}[{s.n}:{s.n+s.c-1}]"
    def regs(s): return {(s.f, s.n + i) for i in range(s.c)}
    def __getitem__(s, i):
        if isinstance(i, slice):
            st = i.start or 0; en = i.stop if i.stop is not None else s.c
            assert 0 <= st < en <= s.c
            return R(s.f, s.n + st, en - st)
        assert 0 <= i < s.c, (str(s), i)
        return R(s.f, s.n + i, 1)
def V(n, c=1): return R('v', n, c)
def A(n, c=1): return R('a', n, c)
def S(n, c=1): return R('s', n, c)
VCC = R('s', 1000, 2); M0 = R('s', 1010, 1)
def rs(x):
    if isinstance(x, R): return x.regs()
    return set()
def txt(x):
    if x is VCC: return "vcc"
    if x is M0: return "m0"
    if isinstance(x, float): return repr(x)
    return str(x)

class Ins:
    __slots__ = ("t", "k", "wr", "rd", "c", "ws")
    def __init__(s, t, k, wr=(), rd=(), c=()):
        s.t, s.k, s.wr, s.rd, s.c = t, k, set(wr), set(rd), set(c)
        s.ws = 1
TRANS = ("v_exp_f32", "v_rcp_f32", "v_log_f32", "v_rsq_f32", "v_sqrt_f32")
VALUK = ("valu", "trans", "perm", "rfl")

def need(p, c):
    n = 0
    pv = p.k in VALUK; cv = c.k in VALUK
    if pv and c.k == "mfma" and (p.wr & (c.rd | c.c)): n = max(n, 2)
    if p.k == "mfma":
        if (cv or c.k in ("vmem", "ds", "dma")) and (p.wr & (c.rd | c.wr)): n = max(n, 8)
        if c.k == "mfma":
            if p.wr & c.rd: n = max(n, 8)
            if (p.wr & c.c) and p.wr != c.c: n = max(n, 6)
            if (p.wr & c.wr) and not (p.wr & c.c): n = max(n, 8)
        if cv and (p.c & c.wr): n = max(n, 3)
    if p.k == "trans" and cv and c.k != "trans" and (p.wr & c.rd): n = max(n, 1)
    if p.k == "trans" and c.k == "trans" and (p.wr & c.rd): n = max(n, 1)
    if pv and c.k == "perm" and (p.wr & c.rd): n = max(n, 2)
    if pv and c.k == "rfl" and (p.wr & c.rd): n = max(n, 1)
    sw = {x for x in p.wr if x[0] == 's'}
    if pv and sw:
        if c.k in ("vmem", "dma") and (sw & c.rd): n = max(n, 5)
        if cv and (sw & c.rd): n = max(n, 2)
        if c.k in ("salu", "branch") and (sw & c.rd): n = max(n, 2)
    if p.k == "salu" and c.k == "dma" and (M0.regs() & p.wr): n = max(n, 1)
    if p.k == "vmem" and p.t.lstrip().startswith(("buffer_store_dwordx4", "global_store_dwordx4")) and cv and (p.rd & c.wr): n = max(n, 2)
    return n

class Prog:
    def __init__(s):
        s.L = []
        s.nops = 0
    def _add(s, ins):
        if ins.k not in ("label", "dir"):
            req = 0; dist = 0
            for p in reversed(s.L):
                if p.k == "dir": continue
                if p.k == "label": continue
                n = need(p, ins)
                if n > dist: req = max(req, n - dist)
                dist += p.ws
                if dist >= 12: break
            if req > 0:
                s.nop(req); s.nops += 1
        s.L.append(ins)
    def nop(s, n):
        while n > 0:
            k = min(n, 16)
            i = Ins(f"  s_nop {k-1}", "nop"); i.ws = k; s.L.append(i); n -= k
    def raw(s, t): s.L.append(Ins(t, "dir"))
    def label(s, n): s.L.append(Ins(f"{n}:", "label"))
    def cmt(s, t): s.L.append(Ins(f"  ; {t}", "dir"))
    def mfma(s, D, a, b, c):
        s._add(Ins(f"  v_mfma_f32_16x16x32_bf16 {D}, {a}, {b}, {txt(c)}", "mfma", D.regs(), rs(a) | rs(b), rs(c)))
    def v(s, op, d, *src, extra="", rmw=False):
        k = "trans" if op in TRANS else "valu"
        if op.startswith("v_permlane"): k = "perm"
        if op in ("v_readfirstlane_b32", "v_readlane_b32"): k = "rfl"
        rd = set()
        for x in src: rd |= rs(x)
        wr = rs(d)
        if k == "perm": rd |= rs(d); wr |= rs(src[0])
        if rmw or op in ("v_fmac_f32",): rd |= rs(d)
        if op.startswith("v_cndmask") and len(src) == 3: pass
        s._add(Ins(f"  {op} {txt(d)}, " + ", ".join(txt(x) for x in src) + extra, k, wr, rd))
    def s(s_, op, *ops):
        wr = set(); rd = set()
        if op.startswith(("s_cmp", "s_setprio", "s_sleep")):
            for x in ops: rd |= rs(x)
        else:
            wr = rs(ops[0])
            for x in ops[1:]: rd |= rs(x)
        s_._add(Ins(f"  {op} " + ", ".join(txt(x) for x in ops), "salu", wr, rd))
    def smem(s, op, d, base, off):
        s._add(Ins(f"  {op} {d}, {base}, {off}", "smem", rs(d), rs(base)))
    def br(s, op, lab, rd=()):
        s._add(Ins(f"  {op} {lab}", "branch", (), rd))
    def wait(s, vm=None, lg=None):
        t = "  s_waitcnt" + (f" vmcnt({vm})" if vm is not None else "") + (f" lgkmcnt({lg})" if lg is not None else "")
        s._add(Ins(t, "wait"))
    def barrier(s): s._add(Ins("  s_barrier", "barrier"))
    def ds_read(s, op, d, addr, off):
        assert 0 <= off < 65536
        s._add(Ins(f"  {op} {d}, {addr} offset:{off}", "ds", rs(d), rs(addr)))
    def ds_write(s, op, addr, d, off):
        s._add(Ins(f"  {op} {addr}, {d} offset:{off}", "ds", (), rs(addr) | rs(d)))
    def bload(s, d, voff, srd, soff, off, flags="", op="buffer_load_dwordx4"):
        assert 0 <= off < 4096
        s._add(Ins(f"  {op} {d}, {voff}, {srd}, {txt(soff)} offen offset:{off}{flags}", "vmem", rs(d), rs(voff) | rs(srd) | rs(soff)))
    def bstore(s, d, voff, srd, soff, off, flags="", op="buffer_store_dwordx4"):
        assert 0 <= off < 4096
        s._add(Ins(f"  {op} {d}, {voff}, {srd}, {txt(soff)} offen offset:{off}{flags}", "vmem", (), rs(d) | rs(voff) | rs(srd) | rs(soff)))
    def dma(s, voff, srd, soff, off, flags=""):
        assert 0 <= off < 4096
        s._add(Ins(f"  buffer_load_dwordx4 {voff}, {srd}, {txt(soff)} offen offset:{off}{flags} lds", "dma", (), rs(voff) | rs(srd) | rs(soff) | M0.regs()))
    def gen(s, t, k, wr=(), rd=()):
        w = set(); r = set()
        for x in wr: w |= rs(x)
        for x in rd: r |= rs(x)
        s._add(Ins("  " + t, k, w, r))
    def text(s): return "\n".join(i.t for i in s.L) + "\n"
    def count(s): return sum(1 for i in s.L if i.k not in ("dir", "label"))

def kdesc(name, vgpr=512, accum=256, sgpr=102):
    return f""".amdhsa_kernel {name}
  .amdhsa_next_free_vgpr {vgpr}
  .amdhsa_next_free_sgpr {sgpr}
  .amdhsa_accum_offset {accum}
  .amdhsa_group_segment_fixed_size 0
  .amdhsa_kernarg_size 104
  .amdhsa_user_sgpr_count 2
  .amdhsa_user_sgpr_kernarg_segment_ptr 1
  .amdhsa_system_sgpr_workgroup_id_x 1
.end_amdhsa_kernel
"""
```

```python
import sys, math, struct
from asmlib import *
NAME = "concat_heads__gqa_block_cached__gqa_block_cached__near_ridge"
def f2u(x): return struct.unpack("<I", struct.pack("<f", x))[0]

TILE = 16384
KRING, VRING = 0, 3 * TILE
NKS, NVS = 3, 3
XT = 18432
W0RING = 2 * TILE
X0RING = 6 * TILE
XB, WB = 6 * TILE, 6 * TILE + XT
PHI = [0, 2, 3, 1]
def kslot(n): return KRING + (n % 3) * TILE
def vslot(n): return VRING + ((n + 2) % 3) * TILE
def w0slot(e): return W0RING + ((e + 1) % 3) * TILE
def x0slot(e): return X0RING + (e % 3) * XT
vLane = V(0); vKbase = V(1); vTbase = V(2); vK = V(3); vV = V(4); vW = V(5)
vV1 = V(6); vXa = V(7); vVbase = V(8); vO = V(9); vMx = V(10); vXbase = V(11)
vDk = [V(20 + i) for i in range(4)]; vDv = [V(24), V(25)]; vDw = V(26); vDx = [V(27), V(28)]
TMP = [V(12 + i) for i in range(8)]
TQ = [V(12, 4), V(16, 4), V(248, 4), V(252, 4)]
def negm(t): return V(20 + 4 * t, 4)
SB = [32, 80]
def Sq(b, al, t): return V(SB[b] + (al * 3 + t) * 4, 4)
def Pq(ks, t): return V(128 + (ks * 3 + t) * 4, 4)
def Oq(u, t): return V(152 + (u * 3 + t) * 4, 4)
def QPq(u, t): return A((u * 3 + t) * 4, 4)
def Qf(t, s): return A(96 + (t * 4 + s) * 4, 4)
def Abuf(par): return A(144 + 16 * par, 16)
def Xf(ks, t): return A(176 + (ks * 3 + t) * 4, 4)
def Lq(t): return A(200 + 4 * t, 4)
ONES = A(212, 4)
def Xf0(kap, t):
    f = kap * 3 + t
    return V(32 + 4 * f, 4) if f < 24 else V(152 + 4 * (f - 24), 4)
sWave = S(3)
SRD_X = [S(16, 4), S(20, 4)]; SRD_K = [S(24, 4), S(32, 4)]; SRD_V = [S(28, 4), S(36, 4)]
SRD_WQ = [S(40, 4), S(44, 4)]; SRD_WS = S(48, 4)
sK = S(52); sV = S(53); sW = S(54); sCnt = S(55); sXo = S(56); sThr = S(57)
sC = S(58, 2); sRet = S(60, 2); sT0 = S(62); sT1 = S(63)
CSCALE = math.log2(math.e) / math.sqrt(128.0)
THR = 16.0
NT = " nt"

class K1:
    def __init__(s, opts=None):
        s.p = Prog(); s.par = 0; s.stubs = []; s.o = opts or {}
        if s.o.get("nomfma"): s.p.mfma = lambda *a, **k: None
        if s.o.get("nods"): s.p.ds_read = lambda *a, **k: None
        if s.o.get("noexp"):
            ov = s.p.v
            def vv(op, *a, **k):
                if op in ("v_exp_f32", "v_cvt_pk_bf16_f32", "v_max3_f32"): return
                ov(op, *a, **k)
            s.p.v = vv
    def stamp(s, i, fine=False):
        if s.o.get("stamps") and bool(s.o.get("fine")) == fine:
            s.p.gen(f"s_memtime {S(64 + 2 * i, 2)}", "smem", [S(64 + 2 * i, 2)])
    def stamp_out(s):
        if not s.o.get("stamps"): return
        p = s.p
        p.wait(lg=0)
        p.v("v_mov_b32", V(1), 0)
        for i in range(16):
            p.v("v_mov_b32", V(2), S(64 + 2 * i))
            p.bstore(V(2), V(1), S(12, 4), 0, 4 * i, op="buffer_store_dword")
    def kreads(s, al):
        ks, a = al >> 1, al & 1
        return [lambda buf, sx=sx: s.p.ds_read("ds_read_b128", buf[4 * sx:4 * sx + 4], vK, (8 * ks + a) * 1024 + 256 * sx) for sx in range(4)]
    def treads(s, addr, ks, half):
        out = []
        for uu in range(4):
            u = 4 * half + uu; sp, ap = u >> 1, u & 1
            for a in range(2):
                if addr == 'V':
                    out.append(lambda buf, uu=uu, a=a, sp=sp, ap=ap: s.p.ds_read("ds_read_b64_tr_b16", buf[4 * uu + 2 * a:4 * uu + 2 * a + 2],
                                                                         (vV, vV1)[ap], (8 * ks + a) * 1024 + 256 * sp))
                else:
                    out.append(lambda buf, uu=uu, a=a, sp=sp, ap=ap: s.p.ds_read("ds_read_b64_tr_b16", buf[4 * uu + 2 * a:4 * uu + 2 * a + 2],
                                                                         vW, (8 * ks + a) * 1024 + 256 * sp + 8 * ap))
        if addr == 'W' and half == 0:
            for t in range(3):
                out.append(lambda buf, t=t: s.p.ds_read("ds_read_b128", Xf(ks, t), vXa, t * 2048 + ks * 512))
        return out
    def kbatch(s, al, sb, czero=False):
        mf = []
        for sx in range(4):
            for t in range(3):
                D = Sq(sb, al, t)
                C = (0 if czero else negm(t)) if sx == 0 else D
                mf.append(lambda buf, D=D, C=C, sx=sx, t=t: s.p.mfma(D, buf[4 * sx:4 * sx + 4], Qf(t, sx), C))
        return dict(reads=s.kreads(al), mf=mf)
    def tbatch(s, addr, ks, half, acc, bop, withl=False, czero=False):
        mf = []
        for t in range(3):
            for uu in range(4):
                D = acc(4 * half + uu, t)
                mf.append(lambda buf, D=D, uu=uu, t=t: s.p.mfma(D, buf[4 * uu:4 * uu + 4], bop(ks, t), 0 if czero else D))
            if withl:
                mf.append(lambda buf, t=t: s.p.mfma(Lq(t), ONES, bop(ks, t), Lq(t)))
        return dict(reads=s.treads(addr, ks, half), mf=mf)
    def run(s, batches, next_reads, fillers=(), fixed=None, budget=8.0):
        p = s.p; fixed = fixed or {}
        fl = list(fillers); slot = 0; credit = 0.0
        for bi, b in enumerate(batches):
            buf = Abuf(s.par); nbuf = Abuf(s.par ^ 1)
            nr = list(batches[bi + 1]["reads"] if bi + 1 < len(batches) else next_reads)
            if b.get("vm") is not None: p.wait(vm=b["vm"], lg=0)
            else: p.wait(lg=0)
            if b.get("bar"):
                if b.get("st") is not None: s.stamp(b["st"], True)
                p.barrier()
                if b.get("st") is not None: s.stamp(b["st"] + 1, True)
            for f in b.get("pre", ()): f()
            for m in b["mf"]:
                last = -1
                for i, it in enumerate(fl):
                    if it[3] <= slot: last = i
                for it in fl[:last + 1]: it[0]()
                fl = fl[last + 1:]
                m(buf)
                credit = min(credit + budget, budget + 4.0)
                for f, c in fixed.get(slot, ()):
                    f(); credit -= c
                n = 0
                while nr and n < 2:
                    nr.pop(0)(nbuf); credit -= 4; n += 1
                while fl and fl[0][2] <= slot and credit >= fl[0][1]:
                    it = fl.pop(0); it[0](); credit -= it[1]
                slot += 1
            assert not nr
            s.par ^= 1
        for it in fl: it[0]()
    def ring_adv(s, sreg, n, base, vdst, vbase):
        p = s.p
        return [(lambda: p.s("s_add_u32", sreg, sreg, TILE), 4),
                (lambda: p.s("s_cmp_eq_u32", sreg, base + n * TILE), 4),
                (lambda: p.s("s_cselect_b32", sreg, base, sreg), 4),
                (lambda: p.v("v_add_u32", vdst, sreg, vbase), 4)]
    def exp_fillers(s, sb, dl0, dl1):
        p = s.p; F = []
        for ks in range(2):
            for t in range(3):
                dl = (dl0, dl1)[ks] + 4 * t
                for a in range(2):
                    q = Sq(sb, 2 * ks + a, t); P = Pq(ks, t)
                    for r in range(4):
                        F.append((lambda q=q, r=r: p.v("v_exp_f32", q[r], q[r]), 8, 0, dl))
                    F.append((lambda q=q, P=P, a=a: p.v("v_cvt_pk_bf16_f32", P[2 * a], q[0], q[1]), 4, 0, dl))
                    F.append((lambda q=q, P=P, a=a: p.v("v_cvt_pk_bf16_f32", P[2 * a + 1], q[2], q[3]), 4, 0, dl))
        return F
    def max_fillers(s, sb):
        p = s.p; F = []
        regs = [(al, Sq(sb, al, t)[r]) for al in range(4) for t in range(3) for r in range(4)]
        F.append((lambda: p.v("v_max3_f32", vMx, regs[0][1], regs[1][1], regs[2][1]), 4, 16, 10 ** 6))
        i = 3
        while i + 1 < 48:
            F.append((lambda i=i: p.v("v_max3_f32", vMx, vMx, regs[i][1], regs[i + 1][1]), 4, 12 * regs[i + 1][0] + 16, 10 ** 6))
            i += 2
        F.append((lambda: p.v("v_max_f32", vMx, vMx, regs[47][1]), 4, 52, 10 ** 6))
        return F
    def step(s, cur, next_reads, tag, qk=True):
        p = s.p; nx = cur ^ 1
        B = []
        if qk: B += [s.kbatch(al, nx) for al in range(4)]
        VB = [s.tbatch('V', ks, h, Oq, Pq, withl=(h == 1)) for ks in range(2) for h in range(2)]
        VB[3]["bar"] = True
        if tag == "t1e": VB[3]["st"] = 0
        if tag == "t1o": VB[3]["st"] = 2
        B += VB
        o = 48 if qk else 0
        F = s.exp_fillers(cur, o, o + 27)
        fixed = {}
        if qk:
            F += s.max_fillers(nx)
            ra = s.ring_adv(sK, NKS, KRING, vK, vKbase)
            for i, x in enumerate(ra): fixed.setdefault(50 + i, []).append(x)
        ra = s.ring_adv(sV, NVS, VRING, vV, vVbase) + [(lambda: p.v("v_xor_b32", vV1, 32, vV), 4)]
        for i, x in enumerate(ra): fixed.setdefault(o + 31 + i, []).append(x)
        s.run(B, next_reads, F, fixed, budget=s.o.get("budget", 9.0))
        if qk:
            p.v("v_cmp_lt_f32", VCC, sThr, vMx)
            p.br("s_cbranch_vccnz", f"L_stub_{tag}", VCC.regs())
            p.label(f"L_back_{tag}")
            s.stubs.append((tag, nx))
    def qp_tile(s, next_reads, czero=False, nextw=None, nextx=None):
        p = s.p
        B = [s.tbatch('W', ks, h, QPq, Xf, czero=(czero and ks == 0)) for ks in range(2) for h in range(2)]
        B[3]["bar"] = True
        fixed = {}
        if nextw is not None:
            fixed[30] = [(lambda: p.v("v_add_u32", vW, nextw, vTbase), 4)]
            fixed[31] = [(lambda: p.v("v_add_u32", vXa, nextx, vXbase), 4)]
        s.run(B, next_reads, (), fixed)
    def rescale(s, sb, init):
        p = s.p
        m = [TMP[0], TMP[1], TMP[2]]; tm = TMP[3]; f = [TMP[4], TMP[6], V(248)]
        for t in range(3):
            r = [Sq(sb, al, t)[i] for al in range(4) for i in range(4)]
            p.v("v_max3_f32", m[t], r[0], r[1], r[2])
            for i in range(3, 15, 2): p.v("v_max3_f32", m[t], m[t], r[i], r[i + 1])
            p.v("v_max_f32", m[t], m[t], r[15])
        for op in ("v_permlane32_swap_b32", "v_permlane16_swap_b32"):
            for t in range(3):
                p.v("v_mov_b32", tm, m[t])
                p.v(op, m[t], tm)
                p.v("v_max_f32", m[t], m[t], tm)
        for t in range(3):
            if not init:
                p.v("v_max_f32", m[t], 0, m[t])
                p.gen(f"v_exp_f32 {f[t]}, -{m[t]}", "trans", [f[t]], [m[t]])
            for i in range(4):
                if init: p.v("v_sub_f32", negm(t)[i], 0, m[t])
                else: p.v("v_sub_f32", negm(t)[i], negm(t)[i], m[t])
            for al in range(4):
                for i in range(4): p.v("v_sub_f32", Sq(sb, al, t)[i], Sq(sb, al, t)[i], m[t])
            if not init:
                for u in range(8):
                    for i in range(4): p.v("v_mul_f32", Oq(u, t)[i], f[t], Oq(u, t)[i])
                for i in range(4):
                    p.v("v_accvgpr_read_b32", tm, Lq(t)[i])
                    p.v("v_mul_f32", tm, f[t], tm)
                    p.v("v_accvgpr_write_b32", Lq(t)[i], tm)
    def qconv(s, zero):
        p = s.p
        for t in range(3):
            for sx in range(4):
                k = (t * 4 + sx) & 1
                t8 = V(12, 8) if k == 0 else V(248, 8)
                for a in range(2):
                    for i in range(4):
                        p.v("v_accvgpr_read_b32", t8[4 * a + i], QPq(2 * sx + a, t)[i])
                for i in range(4): p.v("v_pk_mul_f32", t8[2 * i:2 * i + 2], t8[2 * i:2 * i + 2], sC)
                for i in range(4): p.v("v_cvt_pk_bf16_f32", t8[2 * i], t8[2 * i], t8[2 * i + 1])
                for i in range(4): p.v("v_accvgpr_write_b32", Qf(t, sx)[i], t8[2 * i])
                if zero:
                    for a in range(2):
                        for i in range(4): p.v("v_accvgpr_write_b32", QPq(2 * sx + a, t)[i], 0)
    def zero_state(s):
        p = s.p
        for u in range(8):
            for t in range(3):
                for i in range(4): p.v("v_mov_b32", Oq(u, t)[i], 0)
        for t in range(3):
            for i in range(4): p.v("v_accvgpr_write_b32", Lq(t)[i], 0)
    def epilogue(s, task):
        p = s.p
        inv = V(20, 2)
        for t in range(3):
            p.v("v_accvgpr_read_b32", inv[0], Lq(t)[0])
            p.v("v_rcp_f32", inv[0], inv[0])
            p.s("s_mov_b32", sT0, task * (9437184 if s.o.get("mapx") else 8 * 4096) + t * 131072)
            for sx in range(4):
                q = TQ[(t * 4 + sx) & 3]
                for a in range(2):
                    o = Oq(2 * sx + a, t)
                    for h in range(2):
                        p.v("v_pk_mul_f32", o[2 * h:2 * h + 2], o[2 * h:2 * h + 2], inv, extra=" op_sel_hi:[1,0]")
                for a in range(2):
                    o = Oq(2 * sx + a, t)
                    for h in range(2): p.v("v_cvt_pk_bf16_f32", q[2 * a + h], o[2 * h], o[2 * h + 1])
                if not s.o.get("nostore"): p.bstore(q, vO, SRD_WS, sT0, sx * 1024, s.o.get("oflag", ""))
    def prologue(s):
        p = s.p
        B = [s.kbatch(al, 0, czero=True) for al in range(4)]
        fixed = {}
        ra = s.ring_adv(sK, NKS, KRING, vK, vKbase)
        for i, x in enumerate(ra): fixed.setdefault(28 + i, []).append(x)
        s.run(B, s.kreads(0), (), fixed)
        s.rescale(0, True)
    def task(s, task, withqp):
        p = s.p
        s.stamp(4 + 5 * task)
        s.prologue()
        s.stamp(5 + 5 * task)
        p.s("s_mov_b32", sCnt, 0)
        p.raw(".p2align 6")
        p.label(f"L_loop{task}")
        p.nop(2)
        s.step(0, s.kreads(0), f"t{task}e")
        if withqp:
            s.step(1, s.treads('W', 0, 0), f"t{task}o")
            s.qp_tile(s.kreads(0))
        else:
            s.step(1, s.kreads(0), f"t{task}o")
        p.s("s_add_u32", sCnt, sCnt, 1)
        p.s("s_cmp_lt_u32", sCnt, 7)
        p.br("s_cbranch_scc1", f"L_loop{task}")
        s.stamp(6 + 5 * task)
        s.step(0, s.treads('V', 0, 0), f"t{task}x")
        if withqp:
            s.step(1, s.treads('W', 0, 0), f"t{task}z", qk=False)
            s.qp_tile(s.kreads(0))
        else:
            s.step(1, [], f"t{task}z", qk=False)
        s.stamp(7 + 5 * task)
        s.epilogue(task)
        s.stamp(8 + 5 * task)
    def dma_kv(s, kind, srd, goff, lds):
        p = s.p
        for q in range(4):
            p.s("s_mov_b32", M0, lds + q * 4096)
            p.s("s_mov_b32", sT0, goff + q * 4096)
            for o in range(4):
                b = 4 * q + o
                vo = vDk[(b >> 1) & 3] if kind == "K" else vDv[(b >> 1) & 1]
                p.dma(vo, srd, sT0, o * 1024, NT)
        return 16
    def dma_w(s, srd, row0, stride, lds):
        p = s.p
        for b in range(16):
            p.s("s_mov_b32", M0, lds + b * 1024)
            p.s("s_mov_b32", sT0, (row0 + 4 * b) * stride)
            p.dma(vDw, srd, sT0, 0, s.o.get("wflag", ""))
        return 16
    def dma_x(s, srd, e, lds):
        p = s.p
        for b in range(18):
            p.s("s_mov_b32", M0, lds + b * 1024)
            p.s("s_mov_b32", sT0, b * 8192 + e * 128)
            p.dma(vDx[b & 1], srd, sT0, 0, s.o.get("xflag", ""))
        return 18
    def loader(s):
        p = s.p
        issued = []
        def issue(kind, n):
            if s.o.get("nodma") and kind in "KV" and n >= 3: return
            if kind in "KV" and n >= 32: return
            if s.o.get("nowx") and kind in "WX": return
            tot = sum(x[2] for x in issued)
            if tot > 45 and not s.o.get("nocap"): p.wait(vm=45)
            if s.o.get("fine") and (kind, n) == ("V", 23): s.stamp(9, True)
            if kind == "W":
                c = s.dma_w(SRD_WQ[n // 8], (n % 8) * 64, 8192, w0slot(n) if n < 8 else WB)
            elif kind == "X":
                c = s.dma_x(SRD_X[n // 8], n % 8, x0slot(n) if n < 8 else XB)
            elif kind == "K":
                c = s.dma_kv("K", SRD_K[n // 16], (n % 16) * TILE, kslot(n))
            else:
                c = s.dma_kv("V", SRD_V[n // 16], (n % 16) * TILE, vslot(n))
            issued.append((kind, n, c))
        def bar(req):
            idx = -1
            names = [(x[0], x[1]) for x in issued]
            for r in req:
                if r in names: idx = max(idx, names.index(r))
                else: assert s.o.get("nodma") or s.o.get("nowx"), r
            if idx >= 0:
                n = sum(x[2] for x in issued[idx + 1:])
                p.wait(vm=min(n, 63))
            if s.o.get("fine") and req and req[0] in (("K", 23), ("K", 24)): s.stamp(10 + req[0][1] - 23, True)
            p.barrier()
        for w in range(3):
            issue("W", w); issue("X", w); s.stamp(1 + w)
        issue("K", 0); issue("K", 1); issue("V", 0)
        s.stamp(4)
        bar([("W", 0), ("X", 0)])
        s.stamp(5)
        for e in range(8):
            bar([("W", e + 1), ("X", e + 1)] if e < 7 else [("K", 0), ("K", 1), ("V", 0)])
            if e + 3 < 8:
                issue("W", e + 3); issue("X", e + 3)
            if e == 5: issue("K", 2)
            if e == 6: issue("V", 1)
            if e == 7:
                issue("V", 2); issue("W", 8); issue("X", 8)
            if e < 6: s.stamp(6 + e)
        for tk in range(2):
            for j in range(16):
                J = 16 * tk + j
                req = []
                if j <= 13: req.append(("K", J + 2))
                if j <= 14: req.append(("V", J + 1))
                if tk == 0 and j % 2 == 1: req += [("W", 8 + (j - 1) // 2), ("X", 8 + (j - 1) // 2)]
                if s.o.get("fine") and J in (21, 22): s.stamp(3 + 4 * (J - 21), True)
                bar(req)
                if s.o.get("fine") and J in (20, 21, 22): s.stamp(0 + 4 * (J - 20), True)
                ks = [J + 3, J + 4] if j == 0 else ([J + 4] if j <= 14 else [])
                for k in ks: issue("K", k)
                if s.o.get("fine") and J in (20, 21): s.stamp(1 + 4 * (J - 20), True)
                issue("V", J + 3)
                if s.o.get("fine") and J in (20, 21): s.stamp(2 + 4 * (J - 20), True)
                if tk == 0 and j % 2 == 1:
                    bar([("K", 16), ("K", 17), ("V", 16)] if j == 15 else [])
                    if j < 15:
                        issue("W", 9 + (j - 1) // 2); issue("X", 9 + (j - 1) // 2)
    def srd(s, d, ptr, off_sreg, size):
        p = s.p
        p.s("s_add_u32", d[0], ptr[0], off_sreg)
        p.s("s_addc_u32", d[1], ptr[1], 0)
        p.s("s_mov_b32", d[2], size)
        p.s("s_mov_b32", d[3], 0x20000)
    def build(s, name):
        p = s.p
        p.raw(f".globl {name}"); p.raw(".p2align 8"); p.raw(f".type {name},@function"); p.label(name)
        p.s("s_cmp_ge_u32", S(2), 256); p.br("s_cbranch_scc1", "L_k1_end")
        p.smem("s_load_dwordx16", S(64, 16), S(0, 2), 0)
        p.smem("s_load_dwordx8", S(80, 8), S(0, 2), 64)
        p.smem("s_load_dwordx2", S(88, 2), S(0, 2), 96)
        p.v("v_lshrrev_b32", V(1), 6, V(0))
        p.v("v_readfirstlane_b32", sWave, V(1))
        p.v("v_and_b32", vLane, 63, V(0))
        sb = S(4); sh = S(5); sP = S(8)
        if s.o.get("mapx"):
            p.s("s_and_b32", sb, S(2), 7); p.s("s_lshr_b32", sh, S(2), 3)
        else:
            p.s("s_bfe_u32", sP, S(2), 0x10002)
            p.s("s_bfe_u32", sb, S(2), 0x10001); p.s("s_lshl_b32", sb, sb, 2); p.s("s_bfe_u32", S(9), S(2), 0x20003); p.s("s_add_u32", sb, sb, S(9))
            p.s("s_and_b32", sh, S(2), 1); p.s("s_lshl_b32", sh, sh, 4); p.s("s_lshr_b32", S(9), S(2), 5); p.s("s_add_u32", sh, sh, S(9))
        g = V(13); c16 = V(14); t1 = V(15); t2 = V(16)
        p.v("v_lshrrev_b32", g, 4, vLane); p.v("v_and_b32", c16, 15, vLane)
        p.v("v_lshlrev_b32", t1, 11, g); p.v("v_lshl_add_u32", vTbase, c16, 4, t1)
        ph = V(17); t3 = V(18)
        p.v("v_mov_b32", t3, 0x78)
        p.v("v_lshrrev_b32", t1, 2, c16); p.v("v_lshlrev_b32", t2, 1, t1); p.v("v_lshrrev_b32", ph, t2, t3); p.v("v_and_b32", ph, 3, ph)
        p.v("v_xor_b32", ph, g, ph)
        p.v("v_lshlrev_b32", t1, 11, t1); p.v("v_and_b32", t2, 3, c16); p.v("v_lshl_add_u32", t1, t2, 6, t1)
        p.v("v_lshl_add_u32", vKbase, ph, 4, t1)
        p.v("v_lshrrev_b32", t1, 3, c16); p.v("v_lshlrev_b32", t1, 10, t1); p.v("v_and_b32", t2, 7, c16); p.v("v_lshl_add_u32", t1, t2, 6, t1)
        p.v("v_lshl_add_u32", vXbase, ph, 4, t1)
        p.s("s_mul_i32", S(6), sWave, 6144); p.v("v_add_u32", vXbase, S(6), vXbase)
        p.v("v_lshlrev_b32", t1, 11, g); p.v("v_lshrrev_b32", t2, 2, c16); p.v("v_lshl_add_u32", t1, t2, 6, t1)
        p.v("v_and_b32", t2, 1, g); p.v("v_lshl_add_u32", t1, t2, 5, t1); p.v("v_and_b32", t2, 3, c16); p.v("v_lshl_add_u32", vVbase, t2, 3, t1)
        p.v("v_lshlrev_b32", vO, 4, vLane)
        x4 = V(19)
        p.v("v_and_b32", x4, 3, vLane); p.v("v_bfe_u32", t2, vLane, 2, 2)
        p.v("v_lshlrev_b32", t1, 6, g); p.v("v_lshl_add_u32", t3, t2, 8, t1)
        for k in range(4):
            p.v("v_xor_b32", ph, PHI[k], x4); p.v("v_lshl_add_u32", vDk[k], ph, 4, t3)
        for k in range(2):
            p.v("v_xor_b32", ph, 2 * k, x4); p.v("v_lshl_add_u32", vDv[k], ph, 4, t3)
        p.v("v_lshl_add_u32", t3, t2, 13, t1); p.v("v_lshl_add_u32", vDw, x4, 4, t3)
        p.v("v_bfe_u32", t2, vLane, 2, 3); p.v("v_lshrrev_b32", t1, 5, vLane); p.v("v_lshlrev_b32", t1, 6, t1)
        p.v("v_lshl_add_u32", t3, t2, 10, t1)
        for k in range(2):
            p.v("v_bfe_u32", t1, vLane, 4, 1); p.v("v_add_u32", t1, 2 * k, t1); p.v("v_lshlrev_b32", t1, 1, t1)
            p.v("v_mov_b32", t2, 0x78); p.v("v_lshrrev_b32", t1, t1, t2); p.v("v_and_b32", t1, 3, t1)
            p.v("v_xor_b32", t1, t1, x4); p.v("v_lshl_add_u32", vDx[k], t1, 4, t3)
        p.wait(lg=0)
        ptr = lambda i: S(64 + 2 * i, 2)
        so = S(6); so2 = S(7)
        mapx = s.o.get("mapx")
        if not mapx:
            p.s("s_cmp_eq_u32", sP, 1)
            for i in range(5): p.s("s_cselect_b64", ptr(i), ptr(5 + i), ptr(i))
        P2 = (lambda i: ptr(5 + i)) if mapx else ptr
        p.s("s_mul_i32", so, sb, 147456)
        s.srd(SRD_X[0], ptr(0), so, 147456); s.srd(SRD_X[1], P2(0), so, 147456)
        p.s("s_lshl_b32", so, sb, 5); p.s("s_add_u32", so, so, sh); p.s("s_lshl_b32", so, so, 18)
        s.srd(SRD_K[0], ptr(1), so, 262144); s.srd(SRD_V[0], ptr(2), so, 262144)
        if not mapx: p.s("s_add_u32", so, so, 8 << 18)
        s.srd(SRD_K[1], P2(1), so, 262144); s.srd(SRD_V[1], P2(2), so, 262144)
        p.s("s_lshl_b32", so, sh, 8); p.s("s_sub_u32", so2, 4194304, so)
        s.srd(SRD_WQ[0], ptr(3), so, so2)
        if not mapx:
            p.s("s_add_u32", so, so, 8 << 8); p.s("s_sub_u32", so2, 4194304, so)
        s.srd(SRD_WQ[1], P2(3), so, so2)
        p.s("s_mov_b32", so, sb)
        if not mapx:
            p.s("s_lshl_b32", so2, sP, 3); p.s("s_add_u32", so, so, so2)
        p.s("s_mul_i32", so, so, 9); p.s("s_min_u32", so2, sWave, 2); p.s("s_mul_i32", so2, so2, 3); p.s("s_add_u32", so, so, so2)
        p.s("s_lshl_b32", so, so, 17); p.s("s_lshl_b32", so2, sh, 12); p.s("s_add_u32", so, so, so2)
        p.s("s_sub_u32", so2, 18874368, so)
        s.srd(SRD_WS, ptr(12), so, so2)
        if s.o.get("stamps"):
            p.s("s_lshl_b32", so, S(2), 2); p.s("s_add_u32", so, so, sWave); p.s("s_lshl_b32", so, so, 6)
            p.s("s_add_u32", so, so, 64 << 20)
            s.srd(S(12, 4), ptr(12), so, 64)
            for i in range(16): p.s("s_mov_b64", S(64 + 2 * i, 2), 0)
        s.stamp(0)
        p.s("s_cmp_eq_u32", sWave, 3); p.br("s_cbranch_scc1", "L_loader")
        p.s("s_mov_b32", sK, kslot(0)); p.s("s_mov_b32", sV, vslot(0))
        p.v("v_add_u32", vK, sK, vKbase); p.v("v_add_u32", vV, sV, vVbase); p.v("v_xor_b32", vV1, 32, vV)
        p.v("v_add_u32", vW, w0slot(0), vTbase); p.v("v_add_u32", vXa, x0slot(0), vXbase)
        p.s("s_mov_b32", sThr, f2u(float("inf") if (s.o.get("nodma") or s.o.get("nothr")) else THR)); p.s("s_mov_b32", sC[0], f2u(CSCALE)); p.s("s_mov_b32", sC[1], f2u(CSCALE))
        p.v("v_mov_b32", V(13), 0x3F803F80)
        for i in range(4): p.v("v_accvgpr_write_b32", ONES[i], V(13))
        s.stamp(1)
        p.barrier()
        s.stamp(2)
        for f in s.treads('W', 0, 0): f(Abuf(s.par))
        for e in range(8):
            p.cmt(f"---- P0 tile {e}")
            nr = s.treads('W', 0, 0) if e < 7 else s.kreads(0)
            s.qp_tile(nr, czero=(e == 0), nextw=(w0slot(e + 1) if e < 7 else WB), nextx=(x0slot(e + 1) if e < 7 else XB))
        s.stamp(3)
        s.qconv(True)
        s.zero_state()
        s.task(0, True)
        s.qconv(False)
        s.zero_state()
        s.task(1, False)
        s.stamp_out()
        p.br("s_branch", "L_k1_end")
        for tag, nx in s.stubs:
            p.label(f"L_stub_{tag}")
            p.gen(f"s_call_b64 {sRet}, L_rare{nx}", "salu", [sRet])
            p.br("s_branch", f"L_back_{tag}")
        for nx in range(2):
            p.label(f"L_rare{nx}")
            p.nop(10)
            s.rescale(nx, False)
            p.nop(4)
            p.gen(f"s_setpc_b64 {sRet}", "branch", [], [sRet])
        p.label("L_loader")
        s.loader()
        s.stamp(13)
        s.stamp_out()
        p.label("L_k1_end")
        p.gen("s_endpgm", "branch")
        return p

HEAD = open("cdna_kernels/" + NAME + ".s.ref").read().split("; Override")[0]
def assemble(launches, progs, descs):
    t = HEAD
    for l in launches: t += l + "\n"
    t += '.amdgcn_target "amdgcn-amd-amdhsa--gfx950"\n.text\n'
    for p in progs: t += p.text()
    t += '.section .rodata,"a"\n'
    for d in descs: t += ".p2align 6\n" + d
    return t


def build_k2(name, o=None):
    o = o or {}
    p = Prog()
    p.raw(f".globl {name}"); p.raw(".p2align 8"); p.raw(f".type {name},@function"); p.label(name)
    p.s("s_cmp_ge_u32", S(2), 256); p.br("s_cbranch_scc1", "L_k2_end")
    p.smem("s_load_dwordx2", S(64, 2), S(0, 2), 32); p.smem("s_load_dwordx2", S(66, 2), S(0, 2), 72)
    p.smem("s_load_dwordx2", S(68, 2), S(0, 2), 80); p.smem("s_load_dwordx2", S(70, 2), S(0, 2), 96)
    p.v("v_lshrrev_b32", V(1), 6, V(0)); p.v("v_readfirstlane_b32", sWave, V(1)); p.v("v_and_b32", vLane, 63, V(0))
    sP, sb, sq, sc = S(4), S(5), S(6), S(7)
    p.s("s_bfe_u32", sP, S(2), 0x10002)
    p.s("s_bfe_u32", sb, S(2), 0x10001); p.s("s_lshl_b32", sb, sb, 2); p.s("s_bfe_u32", S(9), S(2), 0x20003); p.s("s_add_u32", sb, sb, S(9))
    p.s("s_bfe_u32", sq, S(2), 0x10005); p.s("s_lshl_b32", sq, sq, 2)
    p.s("s_and_b32", sc, S(2), 1); p.s("s_lshl_b32", sc, sc, 2); p.s("s_lshr_b32", S(9), S(2), 6); p.s("s_add_u32", sc, sc, S(9))
    p.s("s_lshl_b32", sc, sc, 6)
    g = V(13); c16 = V(14); t1 = V(15); t2 = V(16)
    vOo = [V(2 + t) for t in range(5)]; vR = [V(7), V(8)]; vD = V(9); vSt = V(10); vRed = V(11)
    p.v("v_lshrrev_b32", g, 4, vLane); p.v("v_and_b32", c16, 15, vLane)
    p.v("v_lshlrev_b32", vOo[0], 4, vLane)
    for t in range(1, 5): p.v("v_add_u32", vOo[t], t * 131072, vOo[0])
    p.v("v_lshrrev_b32", t1, 1, g); p.v("v_lshlrev_b32", t1, 10, t1); p.v("v_and_b32", t2, 1, g)
    p.v("v_mul_u32_u24", t2, 288, t2); p.v("v_add_u32", t1, t1, t2)
    p.v("v_lshrrev_b32", t2, 2, c16); p.v("v_lshl_add_u32", t1, t2, 6, t1); p.v("v_and_b32", t2, 3, c16); p.v("v_lshl_add_u32", t1, t2, 3, t1)
    p.s("s_lshl_b32", S(10), sWave, 14)
    p.v("v_add_u32", vR[0], S(10), t1); p.v("v_xor_b32", vR[1], 32, vR[0])
    p.v("v_bfe_u32", t1, vLane, 4, 1); p.v("v_lshlrev_b32", t1, 1, t1); p.v("v_and_b32", t2, 3, vLane); p.v("v_xor_b32", t1, t1, t2)
    p.v("v_lshrrev_b32", t2, 5, vLane); p.v("v_lshl_add_u32", t1, t2, 2, t1); p.v("v_lshlrev_b32", t1, 4, t1)
    p.v("v_bfe_u32", t2, vLane, 2, 3); p.v("v_lshl_add_u32", vD, t2, 10, t1)
    p.v("v_lshlrev_b32", t1, 11, c16); p.v("v_lshl_add_u32", vSt, g, 3, t1)
    p.wait(lg=0)
    SO, SW, SOUT = S(16, 4), S(20, 4), S(24, 4)
    so, so2 = S(11), S(12)
    def srd(d, ptr, off, size):
        p.s("s_add_u32", d[0], ptr[0], off); p.s("s_addc_u32", d[1], ptr[1], 0); p.s("s_mov_b32", d[2], size); p.s("s_mov_b32", d[3], 0x20000)
    p.s("s_lshl_b32", so, sP, 3); p.s("s_add_u32", so, so, sb); p.s("s_mul_i32", so, so, 9); p.s("s_add_u32", so, so, sq)
    p.s("s_lshl_b32", so, so, 17); p.s("s_lshl_b32", so2, sWave, 15); p.s("s_add_u32", so, so, so2); p.s("s_sub_u32", so2, 18874368, so)
    srd(SO, S(70, 2), so, so2)
    p.s("s_cmp_eq_u32", sP, 1); p.s("s_cselect_b64", S(64, 2), S(66, 2), S(64, 2))
    p.s("s_lshl_b32", so, sWave, 20); p.s("s_lshl_b32", so2, sc, 1); p.s("s_add_u32", so, so, so2); p.s("s_sub_u32", so2, 4194304, so)
    srd(SW, S(64, 2), so, so2)
    p.s("s_mul_i32", so, sb, 144); p.s("s_lshl_b32", so2, sq, 4); p.s("s_add_u32", so, so, so2); p.s("s_lshl_b32", so, so, 11)
    p.s("s_lshl_b32", so2, sP, 10); p.s("s_add_u32", so, so, so2); p.s("s_lshl_b32", so2, sc, 1); p.s("s_add_u32", so, so, so2)
    p.s("s_sub_u32", so2, 2359296, so)
    srd(SOUT, S(68, 2), so, so2)
    sG, sGo, sGw, sT = S(30), S(31), S(32), S(33)
    Of = lambda i, t: V(32 + (i * 5 + t) * 4, 4)
    Ab = lambda par: V(112 + 16 * par, 16)
    Acc = lambda t, u: V(144 + (t * 4 + u) * 4, 4)
    def loads(i):
        for t in range(5): p.bload(Of(i, t), vOo[t], SO, sGo, i * 1024, o.get("oflag", ""))
        for b in range(4):
            p.s("s_add_u32", M0, S(10), i * 4096 + b * 1024)
            p.s("s_add_u32", sT, sGw, i * 32768 + b * 8192)
            p.dma(vD, SW, sT, 0, o.get("wflag", ""))
    def reads(i, par):
        for u in range(4):
            for a in range(2):
                p.ds_read("ds_read_b64_tr_b16", Ab(par)[4 * u + 2 * a:4 * u + 2 * a + 2], vR[u & 1], i * 4096 + 2048 * a + 512 * (u >> 1))
    sRot = S(34)
    if o.get("rot"):
        p.s("s_bfe_u32", sRot, S(2), 0x20003); p.s("s_lshr_b32", sT, S(2), 6); p.s("s_add_u32", sRot, sRot, sT); p.s("s_lshl_b32", sRot, sRot, 1)
        p.s("s_bfe_u32", sT, S(2), 0x10005); p.s("s_add_u32", sRot, sRot, sT); p.s("s_and_b32", sRot, sRot, 7)
    else: p.s("s_mov_b32", sRot, 0)
    def setg():
        p.s("s_lshl_b32", sGo, sRot, 12); p.s("s_lshl_b32", sGw, sRot, 17)
        p.s("s_add_u32", sRot, sRot, 1); p.s("s_and_b32", sRot, sRot, 7)
    setg()
    for i in range(4): loads(i)
    for t in range(5):
        for u in range(4):
            for r in range(4): p.v("v_mov_b32", Acc(t, u)[r], 0)
    setg(); p.s("s_mov_b32", sG, 0)
    p.wait(vm=27); reads(0, 0); p.wait(lg=0)
    def group(last):
        for i in range(4):
            par = i & 1
            if not (last and i == 3):
                p.wait(vm=(18 if not last else 9 * (2 - i)))
                reads((i + 1) & 3, par ^ 1)
            for t in range(5):
                for u in range(4): p.mfma(Acc(t, u), Ab(par)[4 * u:4 * u + 4], Of(i, t), Acc(t, u))
            p.wait(lg=0)
            if not last: loads(i)
    p.label("L_k2_loop")
    group(False)
    setg(); p.s("s_add_u32", sG, sG, 1)
    p.s("s_cmp_lt_u32", sG, 7); p.br("s_cbranch_scc1", "L_k2_loop")
    group(True)
    p.s("s_mul_i32", sT, sWave, 20480); p.s("s_add_u32", sT, sT, 65536)
    p.v("v_add_u32", vRed, sT, vOo[0])
    for t in range(5):
        for u in range(4): p.ds_write("ds_write_b128", vRed, Acc(t, u), (t * 4 + u) * 1024)
    p.wait(lg=0); p.barrier()
    p.s("s_lshl_b32", sT, sWave, 10); p.s("s_add_u32", sT, sT, 65536)
    p.v("v_add_u32", vRed, sT, vOo[0])
    p.v("v_add_u32", V(12), 40960, vRed)
    for t in range(5):
        for w in range(4):
            p.ds_read("ds_read_b128", V(32 + (t * 4 + w) * 4, 4), (vRed, V(12))[w >> 1], (w & 1) * 20480 + t * 4096)
        if t == 2: p.wait(lg=0)
    p.wait(lg=0)
    p.s("s_lshl_b32", sT, sWave, 5)
    for t in range(5):
        q = [V(32 + (t * 4 + w) * 4, 4) for w in range(4)]
        for r in range(4):
            p.v("v_add_f32", q[0][r], q[0][r], q[1][r]); p.v("v_add_f32", q[2][r], q[2][r], q[3][r]); p.v("v_add_f32", q[0][r], q[0][r], q[2][r])
        p.v("v_cvt_pk_bf16_f32", q[1][0], q[0][0], q[0][1]); p.v("v_cvt_pk_bf16_f32", q[1][1], q[0][2], q[0][3])
        p.bstore(q[1][0:2], vSt, SOUT, sT, 0, op="buffer_store_dwordx2")
        p.s("s_add_u32", sT, sT, 32768)
    p.label("L_k2_end")
    p.gen("s_endpgm", "branch")
    return p

def full(fn, o1=None, o2=None):
    k = K1(o1); p1 = k.build("attn_kernel"); p2 = build_k2("oproj_kernel", o2)
    print(fn, "instrs", p1.count(), p2.count(), file=sys.stderr)
    t = assemble(["; @launch kernel=attn_kernel grid=(256,1,1) block=(256,1,1) lds=163840",
                  "; @launch kernel=oproj_kernel grid=(256,1,1) block=(256,1,1) lds=147456"], [p1, p2],
                 [kdesc("attn_kernel"), kdesc("oproj_kernel", vgpr=256, accum=256)])
    open(fn, "w").write(t)

def k2only(fn, o2):
    p2 = build_k2(NAME + "_kernel", o2)
    t = assemble(["; @launch grid=(256,1,1) block=(256,1,1) lds=147456"], [p2], [kdesc(NAME + "_kernel", vgpr=256, accum=256)])
    open(fn, "w").write(t)
def one(fn, **o):
    k = K1(o); p = k.build(NAME + "_kernel")
    print(fn, "instrs", p.count(), "auto nops", p.nops, file=sys.stderr)
    t = assemble(["; @launch grid=(256,1,1) block=(256,1,1) lds=163840"], [p], [kdesc(NAME + "_kernel")])
    open(fn, "w").write(t)
if __name__ == "__main__":
    B = dict(stamps=True, nomfma=True, nods=True, noexp=True, nothr=True)
    one("k1stamp.s", stamps=True)
    one("k1stampx.s", stamps=True, mapx=True)
    one("k1_baronly.s", **B)
    one("k1_baronlyx.s", mapx=True, **B)
    full("full.s")
    full("full_ont.s", dict(oflag=" nt"))
    full("full_rot.s", dict(oflag=" nt"), dict(rot=True))
    full("full_rot2.s", dict(), dict(rot=True))
    k2only("k2only.s", dict()); k2only("k2rot.s", dict(rot=True))
```

```python
import sys, math, struct
from asmlib import *
import gen as G1
NAME = G1.NAME
f2u = G1.f2u
TILE = 16384; XT = 18432
NKS, NVS = 4, 3
KRING, VRING = 0, 4 * TILE
X0RING = 6 * TILE
XB, WB = 7 * TILE, 7 * TILE + XT
FLAGS = 150 * 1024
PHI = [0, 2, 3, 1]
def kslot(n): return KRING + (n % NKS) * TILE
def vslot(n): return VRING + (n % NVS) * TILE
def wslot(n): return WB if n >= 8 else [2, 5, 3][(n + 1) % 3] * TILE
def uslot(n): return [WB, XB, kslot(28), kslot(29), kslot(30), vslot(29), kslot(31), vslot(30), vslot(31)][n % 9]
def xslot(e): return XB if e >= 8 else X0RING + (e % 3) * XT
vLane = V(0); vKbase = V(1); vTbase = V(2); vK = V(3); vV = V(4); vW = V(5)
vW1 = V(11); vV1 = V(6); vXa = V(7); vVbase = V(8); vO = V(9); vMx = V(10); vXbase = V(129)
vFl = V(248); vLf = V(30); vLz = V(40); vFa = V(249); vEp = V(250)
vDx = [V(20 + i) for i in range(4)]; vDk = [V(24 + i) for i in range(4)]; vDv = [V(28), V(29)]; vDw = [V(36 + i) for i in range(4)]
def stage_regs(i): return V(64 + 64 * i, 64) if i < 3 else A(64 * (i - 3), 64)
TMP = [V(12 + i) for i in range(8)]
TQ = [V(12, 4), V(16, 4), V(252, 4)]
def negm(t): return V(20 + 4 * t, 4)
SB = [32, 80]
def Sq(b, al, t): return V(SB[b] + (al * 3 + t) * 4, 4)
def Pq(ks, t): return V(128 + (ks * 3 + t) * 4, 4)
def Oq(u, t): return V(152 + (u * 3 + t) * 4, 4)
def QP1(u, t): return V(32 + (u * 3 + t) * 4, 4)
def QP2(u, t): return A((u * 3 + t) * 4, 4)
QBASE = [96]
def Qf(t, s): return A(QBASE[0] + (t * 4 + s) * 4, 4)
def Qf2(t, s): return A((s * 3 + t) * 4, 4)
QSEL = [0]
def Qcur(t, s): return (Qf, Qf2)[QSEL[0]](t, s)
def Abuf(par): return A(144 + 16 * (par & 3), 16)
def Xf(ks, t): return A(208 + (ks * 3 + t) * 4, 4)
def Lq(t): return A(232 + 4 * t, 4)
ONES = A(244, 4)
sWave = S(3)
SRD_X = S(16, 4); SRD_K = S(24, 4); SRD_V = S(28, 4); SRD_WQ = S(40, 4); SRD_WS = S(48, 4)
sK = S(52); sV = S(53); sNeed = S(54); sCnt = S(55); sF = S(56); sThr = S(57)
sC = S(58, 2); sRet = S(60, 2); sT0 = S(62); sT1 = S(63); sRot = S(20); sWr = S(21); sXr = S(22); sPub = S(23); sSpin = S(32); sKV = [S(33), S(34)]; sWo = [S(35), S(36)]; sOo = [S(37), S(38)]; sOdd = S(46, 2)
SRD_OR = S(16, 4); SRD_PT = S(24, 4); SRD_OUT = S(28, 4); SRD_DBG = S(40, 4); SRD_WO = S(48, 4)
sOH = [[S(20), S(21), S(22), S(23)], [S(33), S(34), S(35), S(36)]]
sKg = S(4); sNc = S(5); sPar = S(8); sPB = S(9); sPo = S(10); sPl = S(11)
vDu = [V(44 + i) for i in range(4)]
vOr = [V(9), V(128), V(129)]; vPl4 = V(252, 4); vPoll = V(252); vOne = V(253); vOut = V(134)
FLAGOFF = 2 * 18874368; sNon = S(39); sFo = S(44); sFl = S(45)
def Of(n, ks, t): return A(48 + ((n % 4) * 6 + ks * 3 + t) * 4, 4)
PARTOFF = 18874368
CSCALE = G1.CSCALE; THR = 16.0

PLANS = {}
class K1:
    def __init__(s, opts=None):
        s.p = Prog(); s.par = 0; s.over = []; s.gspins = []; s.hookcost = {}; s.stubs = []; s.spins = []; s.o = opts or {}
        s.NT = s.o.get("kvflag", " nt")
        if s.o.get("nomfma"): s.p.mfma = lambda *a, **k: None
        if s.o.get("nods"): s.p.ds_read = lambda *a, **k: None
        if s.o.get("lin"):
            od = s.p.ds_read
            s.p.ds_read = lambda op, d, addr, off: od(op, d, vO if op != "ds_read_b32" else addr, off)
        if s.o.get("noexp"):
            ov = s.p.v
            def vv(op, *a, **k):
                if op in ("v_exp_f32", "v_cvt_pk_bf16_f32", "v_max3_f32"): return
                ov(op, *a, **k)
            s.p.v = vv
        s.stream()
    def stream(s):
        rel = {}; ep = 0
        for e in range(8):
            ep += 1; rel[("W", e)] = ep; rel[("X", e)] = ep
        for J in range(32):
            ep += 1; rel[("V", J)] = ep
            if J % 16 < 15: rel[("K", J + 1)] = ep
            if J % 16 == 0: rel[("K", J)] = ep
            if J < 16 and J % 2 == 1:
                ep += 1; rel[("W", 8 + J // 2)] = ep; rel[("X", 8 + J // 2)] = ep
        for n in range(16):
            ep += 1; rel[("U", n)] = ep
        def need(k, n):
            if k == "U":
                if n >= 9: return rel[("U", n - 9)]
                return rel[[("W", 15), ("X", 15), ("K", 28), ("K", 29), ("K", 30), ("V", 29), ("K", 31), ("V", 30), ("V", 31)][n]]
            if k == "W": return rel[("X", 7)] if n == 8 else (rel[("W", n - 1)] if n > 8 else (rel[("W", n - 3)] if n >= 3 else 0))
            if k == "X": return rel[("X", 7)] if n == 8 else (rel[("X", n - 1)] if n > 8 else (rel[("X", n - 3)] if n >= 3 else 0))
            if k == "K": return {0: 0, 1: 0, 2: rel[("W", 5)], 3: rel[("W", 7)]}[n] if n < 4 else rel[("K", n - 4)]
            return {0: 0, 1: rel[("W", 6)], 2: rel[("X", 6)]}[n] if n < 3 else rel[("V", n - 3)]
        order = []
        kv0 = s.o.get("kvpos", {3: ("K", 0), 5: ("K", 1), 6: ("V", 0)})
        for e in range(8):
            order += [("X", e), ("W", e)]
            if e in kv0: order.append(kv0[e])
        s.nP0 = len(order); s.R = len(order)
        for i in range(7):
            order += [("K", 2 * i + 2), ("V", 2 * i + 1), ("K", 2 * i + 3), ("V", 2 * i + 2), ("X", 8 + i), ("W", 8 + i)]
        order += [("V", 15), ("X", 15), ("W", 15), ("K", 16), ("K", 17), ("V", 16)]
        s.R1 = len(order)
        for n in range(18, 32): order += [("K", n), ("V", n - 1)]
        order.append(("V", 31))
        order += [("U", n) for n in range(16)]
        s.T = [("dma", k, n, need(k, n)) for k, n in order]
        s.reg = {}; s.staged = []
        s.pos = {t: i for i, t in enumerate(order)}
    def req(s, tiles): return 1 + max(s.pos[t] for t in tiles)
    def stamp(s, i, fine=False):
        if s.o.get("iter"):
            if i in (6, 11): s.p.gen(f"s_memtime {S(64 + 14 + (16 if i == 11 else 0), 2)}", "smem")
            return
        if s.o.get("stamps") and bool(s.o.get("fine")) == fine: s.p.gen(f"s_memtime {S(64 + 2 * i, 2)}", "smem", [S(64 + 2 * i, 2)])
    def stamp_out(s):
        if not s.o.get("stamps"): return
        p = s.p
        p.wait(lg=0)
        if not s.o.get("iter"): p.s("s_add_u32", S(64 + 30), sSpin, S(64))
        p.v("v_mov_b32", V(1), 0)
        for i in range(16):
            p.v("v_mov_b32", V(2), S(64 + 2 * i))
            p.bstore(V(2), V(1), S(12, 4), 0, 4 * i, op="buffer_store_dword")
    def flag_read(s): s.p.ds_read("ds_read_b32", vFl, vFa, 0) if False else s.p.ds_read("ds_read_b32", vFl, vZ, FLAGS - 131072)
    def release(s):
        p = s.p
        p.ds_write("ds_write_b32", vFa, vEp, 0)
        p.v("v_add_u32", vEp, 1, vEp)
    def check(s, tag):
        p = s.p
        if s.o.get("nochk"): return
        p.v("v_readfirstlane_b32", sF, vFl)
        p.s("s_cmp_ge_u32", sF, sNeed)
        p.br("s_cbranch_scc0", f"L_spin_{tag}")
        p.label(f"L_spun_{tag}")
        s.spins.append(tag)
    def bound(s):
        p = s.p
        p.s("s_add_u32", sSpin, sSpin, 1); p.s("s_cmp_gt_u32", sSpin, 1 << 22); p.br("s_cbranch_scc1", "L_k1_end")
    def kreads(s, al):
        ks, a = al >> 1, al & 1
        return [lambda buf, sx=sx: s.p.ds_read("ds_read_b128", buf[4 * sx:4 * sx + 4], vK, (8 * ks + a) * 1024 + 256 * sx) for sx in range(4)]
    def treads(s, addr, ks, half):
        out = []
        for uu in range(4):
            u = 4 * half + uu; sp, ap = u >> 1, u & 1
            for a in range(2):
                if addr == 'V':
                    out.append(lambda buf, uu=uu, a=a, sp=sp, ap=ap: s.p.ds_read("ds_read_b64_tr_b16", buf[4 * uu + 2 * a:4 * uu + 2 * a + 2],
                                                                         (vV, vV1)[ap], (8 * ks + a) * 1024 + 256 * sp))
                else:
                    out.append(lambda buf, uu=uu, a=a, sp=sp, ap=ap: s.p.ds_read("ds_read_b64_tr_b16", buf[4 * uu + 2 * a:4 * uu + 2 * a + 2],
                                                                         (vW, vW1)[ap], (8 * ks + a) * 1024 + 256 * sp))
        if addr == 'WX' and half == 0:
            for t in range(3):
                out.append(lambda buf, t=t: s.p.ds_read("ds_read_b128", Xf(ks, t), vXa, t * 2048 + ks * 512))
        return out
    def kbatch(s, al, sb, czero=False):
        mf = []
        for sx in range(4):
            for t in range(3):
                D = Sq(sb, al, t)
                C = (0 if czero else negm(t)) if sx == 0 else D
                mf.append(lambda buf, D=D, C=C, sx=sx, t=t: s.p.mfma(D, buf[4 * sx:4 * sx + 4], Qcur(t, sx), C))
        return dict(reads=s.kreads(al), mf=mf)
    def tbatch(s, addr, ks, half, acc, bop, withl=False, czero=False):
        mf = []
        for t in range(3):
            for uu in range(4):
                D = acc(4 * half + uu, t)
                mf.append(lambda buf, D=D, uu=uu, t=t: s.p.mfma(D, buf[4 * uu:4 * uu + 4], bop(ks, t), 0 if czero else D))
            if withl: mf.append(lambda buf, t=t: s.p.mfma(Lq(t), ONES, bop(ks, t), Lq(t)))
        return dict(reads=s.treads(addr, ks, half), mf=mf)
    def prime(s, r0, r1):
        for f in r0: f(Abuf(0))
        for f in r1: f(Abuf(1))
    def plan(s, nslot, items, waits):
        at = {}
        pre = [[] for _ in range(nslot + 1)]; post = [[] for _ in range(nslot)]
        ds = [it for it in items if it["ds"]]; nd = [it for it in items if not it["ds"]]
        fill = [0] * (nslot + 1)
        dsi = 0
        def ready(it, slot):
            if it["id"] in at or it["est"] > slot: return False
            for d in it["deps"]:
                if at.get(d["id"], 10 ** 9) >= slot: return False
            pv = it.get("prev")
            return pv is None or pv["id"] in at
        for slot in range(nslot):
            for it in nd:
                if it["id"] not in at and it.get("hard") is not None and it["hard"] <= slot:
                    chain = [it]
                    while chain[-1].get("prev") is not None and chain[-1]["prev"]["id"] not in at: chain.append(chain[-1]["prev"])
                    for c in reversed(chain):
                        for d in c["deps"]:
                            if d["id"] not in at:
                                if d["ds"]: return None
                                at[d["id"]] = slot - 1; pre[slot].append(d); fill[slot] += d["cost"]
                        at[c["id"]] = slot - 1; pre[slot].append(c); fill[slot] += c["cost"]
            if slot in waits:
                if any(it["grp"] == waits[slot] and it["id"] not in at for it in ds): return None
                lead = min([slot - at[it["id"]] for it in ds if it["grp"] == waits[slot]] or [99])
                fill[slot] += max(0, (s.o.get("lead", 7) - lead)) * 16
            fixedc = (4 if (slot + 1) in waits else 0) + 4 * s.hookcost.get(slot + 1, 0)
            budget = 8 - fixedc; fill[slot + 1] += fixedc
            if dsi < len(ds) and ds[dsi]["slot"] <= slot and ds[dsi]["est"] <= slot:
                it = ds[dsi]; dsi += 1; at[it["id"]] = slot; post[slot].append(it); budget -= 4; fill[slot + 1] += 4
            while budget > 0:
                c = [it for it in nd if it["cost"] <= budget and ready(it, slot)]
                if not c: break
                it = min(c, key=lambda x: (x["dl"], x["id"]))
                if it["cost"] == 4 and budget == 8 and len([x for x in c if x["cost"] == 4]) < 2 and any(x["cost"] == 8 for x in c):
                    it = min([x for x in c if x["cost"] == 8], key=lambda x: (x["dl"], x["id"]))
                at[it["id"]] = slot; post[slot].append(it); budget -= it["cost"]; fill[slot + 1] += it["cost"]
        for it in items:
            if it["id"] not in at:
                pre[nslot].append(it); fill[nslot] += it["cost"] + (8 if it["ds"] else 0)
        for g, extra in (("N0", 0), ("N1", 4)):
            l = [nslot + extra - at.get(it["id"], nslot) for it in ds if it["grp"] == g]
            if l: fill[nslot] += max(0, s.o.get("lead", 7) - min(l)) * 16
        cost = sum(max(16, 8 + f) for f in fill[1:]) + fill[0]
        return cost, pre, post
    def sched(s, mf, items, waits, hooks=None, carry=None, opt=None):
        p = s.p; hooks = hooks or {}; carry = carry or {}
        last = {}
        for i, it in enumerate(items):
            it.setdefault("deps", []); it.setdefault("ds", False); it.setdefault("grp", None); it["id"] = i
            if it.get("seq"):
                it["prev"] = last.get(it["seq"]); last[it["seq"]] = it
        ds = [it for it in items if it["ds"]]
        best = s.plan(len(mf), items, waits)
        if opt:
            key = (opt, len(ds))
            if key in PLANS:
                for it, sl in zip(ds, PLANS[key]): it["slot"] = sl
                best = s.plan(len(mf), items, waits)
            else:
                import random
                rnd = random.Random(1)
                for itn in range(s.o.get("optit", 1500)):
                    it = rnd.choice(ds); old = it["slot"]
                    it["slot"] = max(it["est"], min(len(mf) - 1, old + rnd.choice([-3, -2, -1, 1, 2, 3])))
                    r = s.plan(len(mf), items, waits)
                    if r is not None and r[0] <= best[0]: best = r
                    else: it["slot"] = old
                PLANS[key] = [it["slot"] for it in ds]
        cost, pre, post = best
        dslog = []
        def emit(it):
            it["fn"]()
            if it["ds"]: dslog.append(it["grp"])
        for slot, m in enumerate(mf):
            for it in pre[slot]: emit(it)
            if slot in waits:
                g = waits[slot]
                if g in dslog: n = len(dslog) - 1 - max(i for i, x in enumerate(dslog) if x == g)
                else: n = carry[g] + len(dslog)
                if not s.o.get("nowait"): p.wait(lg=min(n, 15))
            for h in hooks.get(slot, ()):
                if h() == "ds": dslog.append(None)
            m()
            for it in post[slot]: emit(it)
        for it in pre[len(mf)]: emit(it)
        s.over.append(cost)
    def rd_items(s, reads, buf, grp, est, dl, e0=None):
        n = len(reads)
        return [dict(fn=(lambda f=f: f(buf)), cost=4, ds=True, est=(est if e0 is None else e0), slot=est + ((dl - est + 1) * i) // n, dl=0, grp=grp) for i, f in enumerate(reads)]
    def misc_items(s, ops, est, dl, seq):
        n = len(ops)
        return [dict(fn=f, cost=4, est=est, dl=est + (dl - est) * (i + 1) / n, hard=dl + 1, seq=seq) for i, f in enumerate(ops)]
    def ring_adv(s, sreg, n, base, vdst, vbase):
        p = s.p
        return [lambda: p.s("s_add_u32", sreg, sreg, TILE),
                lambda: (p.s("s_cmp_eq_u32", sreg, base + n * TILE), p.s("s_cselect_b32", sreg, base, sreg)),
                lambda: p.v("v_add_u32", vdst, sreg, vbase)]
    def kmf(s, sb, czero=False):
        mf = []
        for al in range(4):
            for sx in range(4):
                for t in range(3):
                    D = Sq(sb, al, t)
                    C = (0 if czero else negm(t)) if sx == 0 else D
                    mf.append(lambda al=al, D=D, C=C, sx=sx, t=t: s.p.mfma(D, Abuf(al)[4 * sx:4 * sx + 4], Qcur(t, sx), C))
        return mf
    def rel_hook(s):
        s.release(); return "ds"
    def step(s, cur, nxt, tag, qk=True, need=None, inc=2):
        p = s.p; nx = cur ^ 1
        o = 48 if qk else 0
        mf = s.kmf(nx) if qk else []
        for ks in range(2):
            for t in range(3):
                for u in range(8):
                    mf.append(lambda ks=ks, t=t, u=u: p.mfma(Oq(u, t), Abuf(2 * ks + (u >> 2))[4 * (u & 3):4 * (u & 3) + 4], Pq(ks, t), Oq(u, t)))
                mf.append(lambda ks=ks, t=t: p.mfma(Lq(t), ONES, Pq(ks, t), Lq(t)))
        I = []
        if qk:
            I += s.rd_items(s.kreads(2), Abuf(2), "A2", 1, 8, 0) + s.rd_items(s.kreads(3), Abuf(3), "A3", 9, 16, 0)
            I += s.rd_items(s.treads('V', 0, 0), Abuf(0), "V0", 17, 30, 12) + s.rd_items(s.treads('V', 0, 1), Abuf(1), "V1", 31, 43, 24)
            I += s.rd_items(s.treads('V', 1, 0), Abuf(2), "V2", 44, 55, 36) + s.rd_items(s.treads('V', 1, 1), Abuf(3), "V3", 56, 67, 48)
            I.append(dict(fn=s.flag_read, cost=4, ds=True, est=60, slot=68, dl=0, grp="FL"))
        else:
            I += s.rd_items(s.treads('V', 1, 0), Abuf(2), "V2", 0, 9) + s.rd_items(s.treads('V', 1, 1), Abuf(3), "V3", 10, 19)
        I += s.rd_items(nxt[0], Abuf(0), "N0", o + 38 - len(nxt[0]) // 2, o + 46, o + 27) + s.rd_items(nxt[1], Abuf(1), "N1", o + 47 - len(nxt[0]) // 2, o + 53, o + 27)
        span = s.o.get('span', 88) if qk else 40
        k = 0
        for ks in range(2):
            for t in range(3):
                hd = o + 27 * ks + 9 * t
                for a in range(2):
                    q = Sq(cur, 2 * ks + a, t); P = Pq(ks, t); E = []
                    for r in range(4):
                        k += 1
                        E.append(dict(fn=(lambda q=q, r=r: p.v("v_exp_f32", q[r], q[r])), cost=8, est=0, dl=min(hd - 3, span * k / 48.0), hard=hd))
                    I += E
                    for h in range(2):
                        I.append(dict(fn=(lambda q=q, P=P, a=a, h=h: p.v("v_cvt_pk_bf16_f32", P[2 * a + h], q[2 * h], q[2 * h + 1])), cost=4, est=0,
                                      dl=min(hd - 2, span * k / 48.0 + 1), hard=hd, deps=E[2 * h:2 * h + 2]))
        if qk:
            regs = [(al, Sq(nx, al, t)[r]) for al in range(4) for t in range(3) for r in range(4)]
            ops = [(0, lambda: p.v("v_max3_f32", vMx, regs[0][1], regs[1][1], regs[2][1]))]
            for i in range(3, 47, 2): ops.append((regs[i + 1][0], lambda i=i: p.v("v_max3_f32", vMx, vMx, regs[i][1], regs[i + 1][1])))
            ops.append((3, lambda: p.v("v_max_f32", vMx, vMx, regs[47][1])))
            for i, (al, f) in enumerate(ops): I.append(dict(fn=f, cost=4, est=12 * al + 16, dl=30 + 70 * (i + 1) / 24.0, seq="mx"))
            I += s.misc_items(s.ring_adv(sK, NKS, KRING, vK, vKbase), 24, 70, "rk")
            I += s.misc_items([(lambda: p.s("s_add_u32", sNeed, sNeed, inc)) if need is None else (lambda: p.s("s_mov_b32", sNeed, need))], 0, 70, "nd")
        vlast = [it for it in I if it.get("grp") == "V3"][-1]
        ra = s.misc_items(s.ring_adv(sV, NVS, VRING, vV, vVbase) + [lambda: p.v("v_xor_b32", vV1, 32, vV)], o + 0, o + 26, "rv")
        ra[2]["deps"] = [vlast]
        I += ra
        if qk: waits = {0: "C0", 12: "C1", 24: "A2", 36: "A3", 48: "V0", 52: "V1", 75: "FL"}
        else: waits = {0: "C0", 4: "C1", 27: "V2", 31: "V3"}
        if qk:
            hooks = {75: [s.rel_hook, lambda: s.check(tag)]}; s.hookcost = {75: 5}
        else:
            hooks = {31: [s.rel_hook]}; s.hookcost = {31: 2}
        s.sched(mf, I, waits, hooks, carry={"C0": s.ncarry, "C1": 0}, opt=("step", qk))
        s.ncarry = len(nxt[1])
        if qk:
            p.v("v_cmp_lt_f32", VCC, sThr, vMx)
            p.br("s_cbranch_vccnz", f"L_stub_{tag}", VCC.regs())
            p.label(f"L_back_{tag}")
            s.stubs.append((tag, nx))
    def qp_tile(s, n, nxt, need, fillers=()):
        p = s.p
        acc = QP1 if n < 8 else QP2
        mf = []
        for ks in range(2):
            for h in range(2):
                for t in range(3):
                    for uu in range(4):
                        D = acc(4 * h + uu, t)
                        mf.append(lambda ks=ks, h=h, D=D, uu=uu, t=t: p.mfma(D, Abuf(2 * ks + h)[4 * uu:4 * uu + 4], Xf(ks, t), 0 if (n == 0 and ks == 0) else D))
        I = s.rd_items(s.treads('WX', 1, 0), Abuf(2), "B2", 0, 7) + s.rd_items(s.treads('WX', 1, 1), Abuf(3), "B3", 8, 15)
        if need is not None: I.append(dict(fn=s.flag_read, cost=4, ds=True, est=16, slot=16, dl=0, grp="FL"))
        I += s.rd_items(nxt[0], Abuf(0), "N0", 24, 31) + s.rd_items(nxt[1], Abuf(1), "N1", 32, 39)
        blast = [it for it in I if it.get("grp") == "B3"][-1]
        if need is not None:
            ops = [lambda: p.s("s_mov_b32", sNeed, need)]
            if n < 8: ops += [lambda: p.v("v_add_u32", vW, wslot(n + 1), vTbase), lambda: p.v("v_xor_b32", vW1, 8, vW),
                              lambda: p.v("v_add_u32", vXa, xslot(n + 1), vXbase)]
            M = s.misc_items(ops, 0, 23, "m")
            for m in M[1:]: m["deps"] = [blast]
            I += M
        I += [dict(fn=f, cost=4, est=2, dl=100 + i, seq="f") for i, f in enumerate(fillers)]
        s.hookcost = {24: 5 if need is not None else 2}
        hk = [s.rel_hook] + ([lambda: s.check(f"p{n}")] if need is not None else [])
        s.sched(mf, I, {0: "C0", 12: "C1", 24: "FL" if need is not None else "B3"}, {24: hk}, carry={"C0": s.ncarry, "C1": 0})
        s.ncarry = len(nxt[1])
    def w2(s): return [s.treads('WX', 0, 0), s.treads('WX', 0, 1)]
    def rescale(s, sb, init):
        p = s.p
        m = [TMP[0], TMP[1], TMP[2]]; tm = TMP[3]; f = [TMP[4], TMP[5], TMP[6]]
        for t in range(3):
            r = [Sq(sb, al, t)[i] for al in range(4) for i in range(4)]
            p.v("v_max3_f32", m[t], r[0], r[1], r[2])
            for i in range(3, 15, 2): p.v("v_max3_f32", m[t], m[t], r[i], r[i + 1])
            p.v("v_max_f32", m[t], m[t], r[15])
        for op in ("v_permlane32_swap_b32", "v_permlane16_swap_b32"):
            for t in range(3):
                p.v("v_mov_b32", tm, m[t]); p.v(op, m[t], tm); p.v("v_max_f32", m[t], m[t], tm)
        for t in range(3):
            if not init:
                p.v("v_max_f32", m[t], 0, m[t])
                p.gen(f"v_exp_f32 {f[t]}, -{m[t]}", "trans", [f[t]], [m[t]])
            for i in range(4):
                if init: p.v("v_sub_f32", negm(t)[i], 0, m[t])
                else: p.v("v_sub_f32", negm(t)[i], negm(t)[i], m[t])
            for al in range(4):
                for i in range(4): p.v("v_sub_f32", Sq(sb, al, t)[i], Sq(sb, al, t)[i], m[t])
            if not init:
                for u in range(8):
                    for i in range(4): p.v("v_mul_f32", Oq(u, t)[i], f[t], Oq(u, t)[i])
                for i in range(4):
                    p.v("v_accvgpr_read_b32", tm, Lq(t)[i]); p.v("v_mul_f32", tm, f[t], tm); p.v("v_accvgpr_write_b32", Lq(t)[i], tm)
    def qconv_ops(s, q0, q1, dst):
        p = s.p; L = []
        for q in (q0, q1):
            for h in range(2): L.append(lambda q=q, h=h: p.v("v_pk_mul_f32", q[2 * h:2 * h + 2], q[2 * h:2 * h + 2], sC))
        for q in (q0, q1):
            for h in range(2): L.append(lambda q=q, h=h: p.v("v_cvt_pk_bf16_f32", q[2 * h], q[2 * h], q[2 * h + 1]))
        for h in range(2):
            L.append(lambda h=h: p.v("v_cndmask_b32", q0[2 * h + 1], q0[2 * h], q1[2 * h], sOdd))
            L.append(lambda h=h: p.v("v_cndmask_b32", q1[2 * h + 1], q1[2 * h], q0[2 * h], sOdd))
        for h in range(2): L.append(lambda h=h: p.v("v_accvgpr_write_b32", dst[h], q0[2 * h + 1]))
        for h in range(2): L.append(lambda h=h: p.v("v_accvgpr_write_b32", dst[2 + h], q1[2 * h + 1]))
        return L
    def qconv1_fillers(s):
        F = []
        for t in range(3):
            for sx in range(4):
                F += [f for f in s.qconv_ops(QP1(2 * sx, t), QP1(2 * sx + 1, t), Qf(t, sx))]
        return F
    def qconv2(s):
        p = s.p
        for sx in range(4):
            for t in range(3):
                t8 = V(12, 8)
                for a in range(2):
                    for i in range(4): p.v("v_accvgpr_read_b32", t8[4 * a + i], QP2(2 * sx + a, t)[i])
                for f in s.qconv_ops(t8[0:4], t8[4:8], Qf2(t, sx)): f()
    def zero_fillers(s):
        p = s.p; F = []
        for u in range(8):
            for t in range(3):
                for i in range(4): F.append(lambda u=u, t=t, i=i: p.v("v_mov_b32", Oq(u, t)[i], 0))
        for t in range(3):
            for i in range(4): F.append(lambda t=t, i=i: p.v("v_accvgpr_write_b32", Lq(t)[i], 0))
        return F
    def epilogue(s, task):
        p = s.p
        inv = V(20, 2)
        for t in range(3):
            p.v("v_accvgpr_read_b32", inv[0], Lq(t)[0])
            p.v("v_rcp_f32", inv[0], inv[0])
            p.s("s_add_u32", sT0, sOo[task], t * 131072)
            for sx in range(4):
                q = TQ[(t * 4 + sx) % 3]
                for a in range(2):
                    o = Oq(2 * sx + a, t)
                    for h in range(2): p.v("v_pk_mul_f32", o[2 * h:2 * h + 2], o[2 * h:2 * h + 2], inv, extra=" op_sel_hi:[1,0]")
                for a in range(2):
                    o = Oq(2 * sx + a, t)
                    for h in range(2): p.v("v_cvt_pk_bf16_f32", q[2 * a + h], o[2 * h], o[2 * h + 1])
                if not s.o.get("nostore"): p.bstore(q, vO, SRD_WS, sT0, sx * 1024, s.o.get("oflag", " sc1"))
    def k2(s): return [s.kreads(0), s.kreads(1)]
    def prologue(s, task, fillers=()):
        p = s.p
        need = s.req([("K", 16 * task + 1), ("V", 16 * task)])
        I = s.rd_items(s.kreads(2), Abuf(2), "A2", 0, 5) + s.rd_items(s.kreads(3), Abuf(3), "A3", 6, 11)
        I.append(dict(fn=s.flag_read, cost=4, ds=True, est=14, slot=14, dl=0, grp="FL"))
        I += s.rd_items(s.kreads(0), Abuf(0), "N0", 24, 31) + s.rd_items(s.kreads(1), Abuf(1), "N1", 32, 39)
        alast = [it for it in I if it.get("grp") == "A3"][-1]
        M = s.misc_items([lambda: p.s("s_mov_b32", sNeed, need)] + s.ring_adv(sK, NKS, KRING, vK, vKbase), 0, 23, "m")
        M[3]["deps"] = [alast]
        I += M
        I += [dict(fn=f, cost=4, est=0, dl=100 + i, seq="f") for i, f in enumerate(fillers)]
        s.hookcost = {24: 3}
        s.sched(s.kmf(0, czero=True), I, {0: "C0", 12: "C1", 24: "FL"}, {24: [lambda: s.check(f"pro{task}")]}, carry={"C0": s.ncarry, "C1": 0})
        s.ncarry = 4
        s.rescale(0, True)
    def task(s, task):
        p = s.p
        QSEL[0] = task
        s.stamp(4 + 5 * task)
        s.prologue(task, s.zero_fillers() if task == 1 else ())
        s.stamp(5 + 5 * task)
        if task == 1:
            p.label("L_getnonce")
            s.bound()
            p.ds_read("ds_read_b32", vPoll, vZ, FLAGS - 131072 + 28); p.wait(vm=0, lg=0)
            p.v("v_readfirstlane_b32", sNon, vPoll)
            p.s("s_cmp_eq_u32", sNon, 0); p.br("s_cbranch_scc1", "L_getnonce")
            s.signal(0, sFo)
        p.s("s_mov_b32", sCnt, 0)
        p.s("s_mov_b32", sNeed, s.R if task == 0 else s.R1)
        p.raw(".p2align 6")
        p.label(f"L_loop{task}")
        p.nop(2)
        if s.o.get("iter"):
            p.gen("s_memtime s[98:99]", "smem"); p.wait(lg=0)
            p.s("s_lshl_b32", M0, sCnt, 1); p.nop(1)
            p.gen(f"s_movreld_b32 s{64 + 16 * task}, s98", "salu")
        s.step(0, s.k2(), f"t{task}e")
        if task == 0:
            s.step(1, s.w2(), f"t{task}o", inc=4)
            s.qp_tile(8, s.k2(), None)
        else: s.step(1, s.k2(), f"t{task}o")
        p.s("s_add_u32", sCnt, sCnt, 1)
        if task == 1:
            p.s("s_cmp_eq_u32", sCnt, s.o.get("oat", 4)); p.br("s_cbranch_scc1", "L_oload")
            p.label("L_oload_back")
        p.s("s_cmp_lt_u32", sCnt, 7)
        p.br("s_cbranch_scc1", f"L_loop{task}")
        s.stamp(6 + 5 * task)
        s.step(0, [s.treads('V', 0, 0), s.treads('V', 0, 1)], f"t{task}x", need=s.req([("V", 16 * task + 15)] + ([("W", 15), ("X", 15)] if task == 0 else [])))
        if task == 0:
            s.step(1, s.w2(), f"t{task}z", qk=False)
            s.qp_tile(15, s.k2(), s.req([("K", 16)]))
        else: s.step(1, [[], []], f"t{task}z", qk=False)
        s.stamp(7 + 5 * task)
        if task == 1:
            p.s("s_mov_b32", sNeed, s.req([("U", 0)]))
            p.v("v_add_u32", vW, uslot(0), vTbase); p.v("v_xor_b32", vW1, 8, vW)
        s.epilogue(task)
        if task == 1:
            s.flag_read(); p.wait(lg=0); s.check("u")
            s.prime(*s.u2()); s.ncarry = 8
            p.v("v_add_u32", vOr[1], 131072, vO); p.v("v_add_u32", vOr[2], 262144, vO)
        s.stamp(8 + 5 * task)
    def signal(s, field, word):
        p = s.p; tag = f"sig{field}"
        p.gen("s_mov_b64 exec, 1", "salu")
        p.v("v_mov_b32", vOne, 1)
        p.gen(f"ds_add_rtn_u32 {vPoll}, {vZ}, {vOne} offset:{FLAGS - 131072 + 4 + 4 * field}", "ds", [vPoll], [vZ, vOne])
        p.wait(lg=0)
        p.v("v_readfirstlane_b32", sT1, vPoll)
        p.s("s_cmp_eq_u32", sT1, 2)
        p.br("s_cbranch_scc0", f"L_{tag}")
        p.v("v_mov_b32", vPoll, sNon)
        p.bstore(vPoll, vO, SRD_DBG, word, field * 128, " sc1", op="buffer_store_dword")
        p.label(f"L_{tag}")
        p.gen("s_mov_b64 exec, -1", "salu")
    def poll_issue(s, field, word):
        p = s.p
        p.gen("s_mov_b64 exec, 1", "salu")
        p.bload(vPl4, vO, SRD_DBG, word, field * 128, " sc1")
        p.gen("s_mov_b64 exec, -1", "salu")
    def poll_test(s):
        p = s.p
        for i in range(4): p.v("v_xor_b32", vPl4[i], sNon, vPl4[i])
        p.v("v_or3_b32", vPl4[0], vPl4[0], vPl4[1], vPl4[2]); p.v("v_or_b32", vPl4[0], vPl4[0], vPl4[3])
        p.v("v_readfirstlane_b32", sT1, vPl4[0])
        p.s("s_cmp_eq_u32", sT1, 0)
    def poll_check(s, field, word):
        p = s.p; tag = f"pl{field}"
        s.poll_test()
        p.br("s_cbranch_scc0", f"L_gspin_{tag}")
        p.label(f"L_gspun_{tag}")
        s.gspins.append((tag, field, word))
    def oloads(s, n):
        p = s.p; r, i, half = n >> 3, (n >> 1) & 3, n & 1
        return [(lambda ks=ks, t=t: p.bload(Of(n, ks, t), vOr[t], SRD_OR, sOH[r][i], half * 2048 + ks * 1024, " sc1")) for ks in range(2) for t in range(3)]
    def u2(s): return [s.treads('W', 0, 0), s.treads('W', 0, 1)]
    def op_tile(s, n):
        p = s.p
        mf = []
        for ks in range(2):
            for h in range(2):
                for t in range(3):
                    for uu in range(4):
                        D = QP1(4 * h + uu, t)
                        mf.append(lambda ks=ks, h=h, D=D, uu=uu, t=t: p.mfma(D, Abuf(2 * ks + h)[4 * uu:4 * uu + 4], Of(n, ks, t), 0 if (n == 0 and ks == 0) else D))
        nxt = s.u2() if n < 15 else [[], []]
        I = s.rd_items(s.treads('W', 1, 0), Abuf(2), "B2", 0, 7) + s.rd_items(s.treads('W', 1, 1), Abuf(3), "B3", 8, 15)
        if n < 15: I.append(dict(fn=s.flag_read, cost=4, ds=True, est=16, slot=16, dl=0, grp="FL"))
        I += s.rd_items(nxt[0], Abuf(0), "N0", 24, 31) + s.rd_items(nxt[1], Abuf(1), "N1", 32, 39)
        blast = [it for it in I if it.get("grp") == "B3"][-1]
        if n < 15:
            M = s.misc_items([lambda: p.s("s_mov_b32", sNeed, s.req([("U", n + 1)])), lambda: p.v("v_add_u32", vW, uslot(n + 1), vTbase),
                              lambda: p.v("v_xor_b32", vW1, 8, vW)], 0, 23, "m")
            for m in M[1:]: m["deps"] = [blast]
            I += M
        L = s.oloads(n + 3) if n + 3 < 16 else []
        if n == 0: L = []
        if n == 6: L = L + [lambda: s.poll_issue(1, sPo)]
        I += [dict(fn=f, cost=8, est=17 + (i if i < 6 else 24), dl=40 + i, seq="ld") for i, f in enumerate(L)]
        later = min(15, n + 2) - n
        pre = [lambda: p.wait(vm=(0 if n == 7 else 6 * later))] if n >= 4 else []
        if n == 0: pre += [lambda: p.wait(vm=12)]
        if n == 2: pre += [lambda: p.wait(vm=6), lambda: s.signal(1, sFo)]
        if n == 7: pre.append(lambda: s.poll_check(1, sPo))
        s.hookcost = {24: 5 if n < 15 else 2}
        hk = [s.rel_hook] + ([lambda: s.check(f"u{n}")] if n < 15 else [])
        s.sched(mf, I, {0: "C0", 12: "C1", 24: "FL" if n < 15 else "B3"}, {0: pre, 24: hk}, carry={"C0": s.ncarry, "C1": 0})
        s.ncarry = len(nxt[1])
    def tail(s):
        p = s.p
        s.stamp(0, True)
        for n in range(16):
            s.op_tile(n)
            if n in (0, 1, 3, 6, 7, 9, 11, 13): s.stamp(1 + (0, 1, 3, 6, 7, 9, 11, 13).index(n), True)
        s.stamp(14); s.stamp(9, True)
        p.s("s_mul_i32", sT0, sWave, 6144)
        for sx in range(1, 4):
            p.s("s_add_u32", sCnt, sKg, sx); p.s("s_and_b32", sCnt, sCnt, 3); p.s("s_mul_i32", sCnt, sCnt, 55296); p.s("s_add_u32", sCnt, sCnt, sT0)
            for t in range(3):
                p.s("s_add_u32", sT1, sCnt, (sx - 1) * 18432 + t * 2048)
                for a in range(2): p.bstore(QP1(2 * sx + a, t), vO, SRD_PT, sT1, a * 1024, " sc1")
        p.v("v_and_b32", vOut, 15, vLane); p.v("v_lshlrev_b32", vOut, 11, vOut); p.v("v_and_b32", V(135), 48, vLane); p.v("v_add_u32", vOut, vOut, V(135))
        s.stamp(10, True)
        p.wait(vm=0)
        s.stamp(11, True)
        s.signal(2, sFl)
        s.poll_issue(2, sPl); p.wait(vm=0)
        s.stamp(12, True)
        s.poll_check(2, sPl)
        s.stamp(13, True)
        p.s("s_mul_i32", sCnt, sKg, 55296); p.s("s_add_u32", sCnt, sCnt, sT0)
        Pt = lambda src, t, a: V(152 + ((t * 3 + src) * 2 + a) * 4, 4)
        for t in range(3):
            for src in range(3):
                p.s("s_add_u32", sT1, sCnt, src * 18432 + t * 2048)
                for a in range(2): p.bload(Pt(src, t, a), vO, SRD_PT, sT1, a * 1024, " sc1")
        for t in range(3):
            p.wait(vm=6 * (2 - t) + t)
            for a in range(2):
                for h in range(2):
                    q = [QP1(a, t)[2 * h:2 * h + 2]] + [Pt(src, t, a)[2 * h:2 * h + 2] for src in range(3)]
                    p.v("v_pk_add_f32", q[0], q[0], q[1]); p.v("v_pk_add_f32", q[2], q[2], q[3]); p.v("v_pk_add_f32", q[0], q[0], q[2])
            q0, q1 = QP1(0, t), QP1(1, t); o = Pt(0, t, 0)
            for q in (q0, q1):
                for h in range(2): p.v("v_cvt_pk_bf16_f32", q[2 * h], q[2 * h], q[2 * h + 1])
            for h in range(2):
                p.v("v_cndmask_b32", o[h], q0[2 * h], q1[2 * h], sOdd)
                p.v("v_cndmask_b32", o[2 + h], q1[2 * h], q0[2 * h], sOdd)
            p.s("s_mov_b32", sT1, t * 32768)
            p.bstore(o, vOut, SRD_OUT, sT1, 0)
    def dma_tile(s, kind, n, regs=None):
        p = s.p
        if kind in "KV":
            lds = kslot(n) if kind == "K" else vslot(n); srd = SRD_K if kind == "K" else SRD_V
            for q in range(4):
                if regs is None: p.s("s_mov_b32", M0, lds + q * 4096)
                p.s("s_add_u32", sT0, sKV[n // 16], (n % 16) * TILE + q * 4096)
                for o in range(4):
                    b = 4 * q + o
                    vo = vDk[(b >> 1) & 3] if kind == "K" else vDv[(b >> 1) & 1]
                    if regs is None: p.dma(vo, srd, sT0, o * 1024, s.NT)
                    else: p.bload(regs[4 * b:4 * b + 4], vo, srd, sT0, o * 1024, s.NT)
            return 16
        if kind == "U":
            r, i, half = n >> 3, (n >> 1) & 3, n & 1
            p.s("s_add_u32", sWr, sNc, i); p.s("s_and_b32", sWr, sWr, 3); p.s("s_lshl_b32", sT1, sKg, 2); p.s("s_add_u32", sWr, sWr, sT1)
            p.s("s_lshl_b32", sWr, sWr, 1); p.s("s_xor_b32", sT1, sPar, r); p.s("s_add_u32", sWr, sWr, sT1); p.s("s_lshl_b32", sWr, sWr, 17)
            for q in range(4):
                p.s("s_mov_b32", M0, uslot(n) + q * 4096)
                p.s("s_add_u32", sT0, sWr, half * 65536 + (32 * (q >> 1) + 8 * (q & 1)) * 1024)
                for o in range(4): p.dma(vDu[o], SRD_WO, sT0, o * 1024, s.o.get("wflag", ""))
            return 16
        if kind == "X":
            p.s("s_add_u32", sXr, sRot, n % 8); p.s("s_and_b32", sXr, sXr, 7); p.s("s_lshl_b32", sXr, sXr, 7)
            for q in range(5):
                p.s("s_mov_b32", M0, xslot(n) + q * 4096)
                if q: p.s("s_add_u32", sXr, sXr, 32768)
                for o in range(4 if q < 4 else 2): p.dma(vDx[o], SRD_X, sXr, o * 1024, s.o.get("xflag", ""))
            return 18
        p.s("s_add_u32", sWr, sRot, n % 8); p.s("s_and_b32", sWr, sWr, 7); p.s("s_lshl_b32", sWr, sWr, 19)
        p.s("s_add_u32", sWr, sWr, sWo[n // 8])
        if s.o.get("whot"): p.s("s_mov_b32", sWr, 0)
        for q in range(4):
            p.s("s_mov_b32", M0, wslot(n) + q * 4096)
            if q: p.s("s_add_u32", sWr, sWr, 131072)
            for o in range(4): p.dma(vDw[o], SRD_WQ, sWr, o * 1024, s.o.get("wflag", ""))
        return 16
    def publish(s, n):
        p = s.p
        p.v("v_mov_b32", vLf, n)
        p.ds_write("ds_max_u32", vLz, vLf, FLAGS - 131072)
    def loader(s):
        p = s.p
        p.s("s_mov_b32", sF, 0)
        p.v("v_mov_b32", vLz, 131072)
        p.v("v_lshlrev_b32", vO, 4, vLane)
        groups = []
        where = {}
        items = 0; pub = 0; gc = []
        lag = s.o.get("lag", 1)
        if s.o.get("fake") or s.o.get("indep"): s.publish(1000)
        for i, (op, kind, n, nf) in enumerate(s.T):
            if s.o.get("fake"): break
            if s.o.get("loadonly") and i >= s.o["loadonly"]: break
            if nf > 0 and not s.o.get("loadonly"):
                p.s("s_cmp_ge_u32", sF, nf)
                p.br("s_cbranch_scc1", f"L_free_{i}")
                p.s("s_mov_b32", sNeed, nf); p.s("s_mov_b32", sPub, items)
                p.gen(f"s_call_b64 {sRet}, L_poll", "salu", [sRet])
                p.label(f"L_free_{i}")
            if op == "dma":
                gc.append(s.dma_tile(kind, n)); groups.append(items); items += 1
            elif op == "stage":
                where[(kind, n)] = len(groups)
                gc.append(s.dma_tile(kind, n, stage_regs(s.reg[(kind, n)]))); groups.append(None)
            else:
                p.wait(vm=min(63, sum(gc[where[(kind, n)] + 1:])))
                regs = stage_regs(s.reg[(kind, n)])
                p.v("v_add_u32", V(31), kslot(n) if kind == "K" else vslot(n), vO)
                for b in range(16): p.ds_write("ds_write_b128", V(31), regs[4 * b:4 * b + 4], b * 1024)
                p.wait(lg=0)
                items += 1
            l = lag if i >= s.nP0 else s.o.get("lag0", 2)
            l = min(l, len(groups))
            pend = [g for g in groups[len(groups) - l:] if g is not None]
            ok = min(pend) if pend else items
            if op != "write": p.wait(vm=sum(gc[len(gc) - l:]) if l else 0)
            if ok > pub:
                s.publish(ok); pub = ok
            if i in (1, 4, 10, 20, 30, 40): s.stamp({1: 1, 4: 2, 10: 3, 20: 4, 30: 5, 40: 6}[i])
        for l in range(lag - 1, -1, -1):
            p.wait(vm=16 * l)
            s.publish(items - l)
        s.stamp(13)
        s.stamp_out()
        p.br("s_branch", "L_k1_end")
        p.label("L_poll")
        q = V(32, 4)
        p.ds_read("ds_read_b128", q, vLz, FLAGS - 131072 + 16); p.wait(lg=0)
        p.v("v_min3_u32", q[0], q[0], q[1], q[2]); p.v("v_readfirstlane_b32", sF, q[0])
        p.s("s_cmp_ge_u32", sF, sNeed); p.br("s_cbranch_scc1", "L_poll_ret")
        p.wait(vm=16)
        p.s("s_sub_u32", sT1, sPub, 1)
        p.v("v_mov_b32", vLf, sT1); p.ds_write("ds_max_u32", vLz, vLf, FLAGS - 131072)
        p.ds_read("ds_read_b128", q, vLz, FLAGS - 131072 + 16); p.wait(lg=0)
        p.v("v_min3_u32", q[0], q[0], q[1], q[2]); p.v("v_readfirstlane_b32", sF, q[0])
        p.s("s_cmp_ge_u32", sF, sNeed); p.br("s_cbranch_scc1", "L_poll_ret")
        p.wait(vm=0)
        p.v("v_mov_b32", vLf, sPub); p.ds_write("ds_max_u32", vLz, vLf, FLAGS - 131072)
        p.label("L_poll_spin")
        s.bound()
        p.ds_read("ds_read_b128", q, vLz, FLAGS - 131072 + 16); p.wait(lg=0)
        p.v("v_min3_u32", q[0], q[0], q[1], q[2]); p.v("v_readfirstlane_b32", sF, q[0])
        p.s("s_cmp_ge_u32", sF, sNeed); p.br("s_cbranch_scc0", "L_poll_spin")
        p.label("L_poll_ret")
        p.gen(f"s_setpc_b64 {sRet}", "branch", [], [sRet])
    srd = G1.K1.srd
    def build(s, name):
        p = s.p
        p.raw(f".globl {name}"); p.raw(".p2align 8"); p.raw(f".type {name},@function"); p.label(name)
        p.s("s_cmp_ge_u32", S(2), 256); p.br("s_cbranch_scc1", "L_k1_end")
        p.smem("s_load_dwordx16", S(64, 16), S(0, 2), 0)
        p.smem("s_load_dwordx8", S(80, 8), S(0, 2), 64)
        p.smem("s_load_dwordx2", S(88, 2), S(0, 2), 96)
        p.v("v_lshrrev_b32", V(1), 6, V(0))
        p.v("v_readfirstlane_b32", sWave, V(1))
        p.v("v_and_b32", vLane, 63, V(0))
        p.v("v_mov_b32", vZ, 131072)
        for i in range(4): p.v("v_mov_b32", V(252 + i), 0)
        p.ds_write("ds_write_b128", vZ, V(252, 4), FLAGS - 131072); p.ds_write("ds_write_b128", vZ, V(252, 4), FLAGS - 131072 + 16)
        p.s("s_mov_b32", sSpin, 0)
        sb = S(4); sh = S(5); sP = S(8)
        p.s("s_bfe_u32", sP, S(2), 0x10002)
        p.s("s_bfe_u32", sb, S(2), 0x10001); p.s("s_lshl_b32", sb, sb, 2); p.s("s_bfe_u32", S(9), S(2), 0x20003); p.s("s_add_u32", sb, sb, S(9))
        p.s("s_and_b32", sh, S(2), 1); p.s("s_lshl_b32", sh, sh, 3); p.s("s_lshr_b32", S(10), S(2), 5); p.s("s_add_u32", sh, sh, S(10))
        p.s("s_lshl_b32", sh, sh, 1)
        if s.o.get("norot"): p.s("s_mov_b32", sRot, 0)
        elif s.o.get("rot") == "b": p.s("s_lshl_b32", sRot, S(9), 1)
        elif s.o.get("rot") == "h": p.s("s_mov_b32", sRot, S(10))
        else:
            p.s("s_lshl_b32", sRot, S(9), 1); p.s("s_add_u32", sRot, sRot, S(10))
        if s.o.get("noswap"): p.s("s_mov_b32", S(11), 0)
        else: p.s("s_and_b32", S(11), S(9), 1)
        for tk in range(2):
            if tk: p.s("s_xor_b32", S(11), S(11), 1)
            p.s("s_lshl_b32", sKV[tk], S(11), 18); p.s("s_lshl_b32", sWo[tk], S(11), 8); p.s("s_lshl_b32", sOo[tk], S(11), 12)
        g = V(13); c16 = V(14); t1 = V(15); t2 = V(16); ph = V(17); t3 = V(18); x4 = V(19)
        p.v("v_lshrrev_b32", g, 4, vLane); p.v("v_and_b32", c16, 15, vLane)
        p.v("v_mov_b32", t3, 0x78)
        p.v("v_and_b32", x4, 3, vLane); p.v("v_bfe_u32", t2, vLane, 2, 2)
        p.v("v_lshlrev_b32", t1, 6, g)
        p.v("v_lshl_add_u32", ph, t2, 13, t1); p.v("v_lshl_add_u32", vDw[0], x4, 4, ph)
        p.v("v_xor_b32", vDw[2], 16, vDw[0])
        p.v("v_add_u32", vDw[3], 3 * (32768 - 1024), vDw[2]); p.v("v_add_u32", vDw[2], 2 * (32768 - 1024), vDw[2])
        p.v("v_add_u32", vDw[1], 32768 - 1024, vDw[0])
        p.v("v_lshl_add_u32", t1, t2, 8, t1)
        for k in range(4):
            p.v("v_xor_b32", ph, PHI[k], x4); p.v("v_lshl_add_u32", vDk[k], ph, 4, t1)
        for k in range(2):
            p.v("v_xor_b32", ph, 2 * k, x4); p.v("v_lshl_add_u32", vDv[k], ph, 4, t1)
        p.v("v_bfe_u32", t2, vLane, 2, 3); p.v("v_lshrrev_b32", t1, 5, vLane); p.v("v_lshlrev_b32", t1, 6, t1)
        p.v("v_lshl_add_u32", t2, t2, 10, t1)
        for k in range(2):
            p.v("v_bfe_u32", t1, vLane, 4, 1); p.v("v_add_u32", t1, 2 * k, t1); p.v("v_lshlrev_b32", t1, 1, t1)
            p.v("v_lshrrev_b32", t1, t1, t3); p.v("v_and_b32", t1, 3, t1)
            p.v("v_xor_b32", t1, t1, x4); p.v("v_lshl_add_u32", vDx[k], t1, 4, t2)
        p.v("v_add_u32", vDx[2], 2 * 7168, vDx[0]); p.v("v_add_u32", vDx[3], 3 * 7168, vDx[1]); p.v("v_add_u32", vDx[1], 7168, vDx[1])
        p.wait(lg=0)
        ptr = lambda i: S(64 + 2 * i, 2)
        so = S(6); so2 = S(7)
        p.s("s_cmp_eq_u32", sP, 1)
        for i in range(5): p.s("s_cselect_b64", ptr(i), ptr(5 + i), ptr(i))
        p.s("s_mul_i32", so, sb, 147456)
        s.srd(SRD_X, ptr(0), so, 147456)
        p.s("s_lshl_b32", so, sh, 8); p.s("s_sub_u32", so2, 4194304, so)
        s.srd(SRD_WQ, ptr(3), so, so2)
        p.s("s_lshl_b32", so, sb, 5); p.s("s_add_u32", so, so, sh); p.s("s_lshl_b32", so, so, 18)
        s.srd(SRD_K, ptr(1), so, 524288); s.srd(SRD_V, ptr(2), so, 524288)
        p.s("s_lshl_b32", so, sP, 3); p.s("s_add_u32", so, so, sb)
        p.s("s_mul_i32", so, so, 9); p.s("s_min_u32", so2, sWave, 2); p.s("s_mul_i32", so2, so2, 3); p.s("s_add_u32", so, so, so2)
        p.s("s_lshl_b32", so, so, 17); p.s("s_lshl_b32", so2, sh, 12); p.s("s_add_u32", so, so, so2)
        p.s("s_sub_u32", so2, 18874368, so)
        s.srd(SRD_WS, ptr(12), so, so2)
        def stamp_init():
            if s.o.get("stamps"):
                p.s("s_lshl_b32", so, S(2), 2); p.s("s_add_u32", so, so, sWave); p.s("s_lshl_b32", so, so, 6)
                p.s("s_add_u32", so, so, 64 << 20)
                s.srd(S(12, 4), ptr(12), so, 64)
                for i in range(16): p.s("s_mov_b64", S(64 + 2 * i, 2), 0)
            s.stamp(0)
        s.stamp_init = stamp_init; s.ptr = ptr

        p.s("s_lshl_b32", so, sP, 3); p.s("s_add_u32", S(96), so, sb)
        p.s("s_lshl_b32", S(97), sP, 10); p.s("s_mul_i32", so, sb, 144 * 2048); p.s("s_add_u32", S(97), S(97), so)
        p.s("s_lshr_b32", sPar, sOo[0], 12)
        p.s("s_lshr_b32", sKg, sh, 3); p.s("s_bfe_u32", sNc, sh, 0x20001); p.s("s_mov_b32", sPB, S(96))
        p.barrier()
        p.s("s_cmp_eq_u32", sWave, 3); p.br("s_cbranch_scc1", "L_loader")
        p.s("s_cmp_eq_u32", sWave, 0); p.br("s_cbranch_scc0", "L_nononce")
        s.srd(SRD_PT, ptr(11), 0, 256)
        p.gen("s_memrealtime s[98:99]", "smem", [S(98, 2)]); p.wait(lg=0)
        p.s("s_or_b32", sNon, S(98), 1)
        p.gen("s_mov_b64 exec, 1", "salu")
        p.v("v_mov_b32", V(130), sNon); p.v("v_mov_b32", V(131), 0); p.v("v_mov_b32", V(132), 0)
        p.gen(f"buffer_atomic_cmpswap v[130:131], v132, {SRD_PT}, 0 offen sc0 sc1", "vmem", [V(130)], [V(130, 2), V(132), SRD_PT])
        p.gen("s_mov_b64 exec, -1", "salu")
        p.label("L_nononce")
        p.s("s_mul_i32", so, sPB, 9); p.s("s_mul_i32", so2, sWave, 3); p.s("s_add_u32", so, so, so2); p.s("s_lshl_b32", so, so, 17)
        s.srd(SRD_OR, ptr(12), so, 3 * 131072)
        p.s("s_lshl_b32", so, sPB, 2); p.s("s_add_u32", so, so, sNc); p.s("s_mul_i32", sPl, so, 384)
        p.s("s_lshl_b32", so2, sKg, 2); p.s("s_add_u32", sFl, sPl, so2)
        p.s("s_mul_i32", so, so, 4 * 55296); p.s("s_add_u32", so, so, PARTOFF)
        s.srd(SRD_PT, ptr(12), so, 4 * 55296)
        p.s("s_lshl_b32", so, sPB, 2); p.s("s_add_u32", so, so, sKg); p.s("s_mul_i32", sPo, so, 384)
        p.s("s_lshl_b32", so2, sNc, 2); p.s("s_add_u32", sFo, sPo, so2)
        p.s("s_mul_i32", so, sWave, 48 * 2048); p.s("s_add_u32", so, so, S(97)); p.s("s_lshl_b32", so2, sNc, 8); p.s("s_add_u32", so, so, so2)
        p.s("s_lshl_b32", so2, sKg, 6); p.s("s_add_u32", so, so, so2); p.s("s_sub_u32", so2, 2359296, so)
        s.srd(SRD_OUT, ptr(10), so, so2)
        s.srd(SRD_DBG, ptr(12), FLAGOFF, 64 * 384)
        for i in range(4):
            p.s("s_add_u32", so, sNc, i); p.s("s_and_b32", so, so, 3); p.s("s_lshl_b32", so2, sKg, 2); p.s("s_add_u32", so, so, so2); p.s("s_lshl_b32", so, so, 13)
            p.s("s_add_u32", sOH[0][i], so, sOo[0]); p.s("s_add_u32", sOH[1][i], so, sOo[1])
        stamp_init()
        if not s.o.get("nowarm"):
            p.gen("s_getpc_b64 s[90:91]", "salu", [S(90, 2)])
            p.label("L_pc")
            p.gen(f"s_sub_u32 s90, s90, L_pc-{name}", "salu", [S(90)], [S(90)]); p.s("s_subb_u32", S(91), S(91), 0)
            p.s("s_lshr_b32", S(6), S(2), 3); p.s("s_mul_i32", S(6), S(6), 3); p.s("s_add_u32", S(6), S(6), sWave); p.s("s_lshl_b32", S(6), S(6), 10)
            p.v("v_lshlrev_b32", V(140), 4, vLane); p.v("v_add_u32", V(140), S(6), V(140))
            p.gen(f"v_min_u32 v140, L_k1_end-{name}-16, v140", "valu", [V(140)], [V(140)])
            p.gen("global_load_dwordx4 v[136:139], v140, s[90:91]", "vmem", [V(136, 4)], [V(140), S(90, 2)])
        if s.o.get("loadonly") and not s.o.get("indep"): p.br("s_branch", "L_k1_end")
        p.v("v_and_b32", t1, 1, g); p.v("v_xor_b32", t1, t1, c16); p.v("v_lshlrev_b32", t1, 4, t1)
        p.v("v_and_b32", t2, 1, c16); p.v("v_lshl_add_u32", t1, t2, 3, t1); p.v("v_lshl_add_u32", vTbase, g, 11, t1)
        p.v("v_and_b32", t1, 1, g); p.v("v_cmp_eq_u32", sOdd, 1, t1)
        p.v("v_lshrrev_b32", t1, 2, c16); p.v("v_lshlrev_b32", t2, 1, t1); p.v("v_lshrrev_b32", ph, t2, t3); p.v("v_and_b32", ph, 3, ph)
        p.v("v_xor_b32", ph, g, ph)
        p.v("v_lshlrev_b32", t1, 11, t1); p.v("v_and_b32", t2, 3, c16); p.v("v_lshl_add_u32", t1, t2, 6, t1)
        p.v("v_lshl_add_u32", vKbase, ph, 4, t1)
        p.v("v_lshrrev_b32", t1, 3, c16); p.v("v_lshlrev_b32", t1, 10, t1); p.v("v_and_b32", t2, 7, c16); p.v("v_lshl_add_u32", t1, t2, 6, t1)
        p.v("v_lshl_add_u32", vXbase, ph, 4, t1)
        p.s("s_mul_i32", S(6), sWave, 6144); p.v("v_add_u32", vXbase, S(6), vXbase)
        p.v("v_lshlrev_b32", t1, 11, g); p.v("v_lshrrev_b32", t2, 2, c16); p.v("v_lshl_add_u32", t1, t2, 6, t1)
        p.v("v_and_b32", t2, 1, g); p.v("v_lshl_add_u32", t1, t2, 5, t1); p.v("v_and_b32", t2, 3, c16); p.v("v_lshl_add_u32", vVbase, t2, 3, t1)
        p.v("v_lshlrev_b32", vO, 4, vLane)
        p.s("s_lshl_b32", S(6), sWave, 2); p.s("s_add_u32", S(6), S(6), FLAGS + 16); p.v("v_mov_b32", vFa, S(6)); p.v("v_mov_b32", vEp, 1)
        p.s("s_mov_b32", sK, kslot(0)); p.s("s_mov_b32", sV, vslot(0))
        p.v("v_add_u32", vK, sK, vKbase); p.v("v_add_u32", vV, sV, vVbase); p.v("v_xor_b32", vV1, 32, vV)
        p.v("v_add_u32", vW, wslot(0), vTbase); p.v("v_xor_b32", vW1, 8, vW); p.v("v_add_u32", vXa, xslot(0), vXbase)
        p.s("s_mov_b32", sThr, f2u(float("inf") if s.o.get("nothr") else THR)); p.s("s_mov_b32", sC[0], f2u(CSCALE)); p.s("s_mov_b32", sC[1], f2u(CSCALE))
        p.v("v_mov_b32", V(13), 0x3F803F80)
        for i in range(4): p.v("v_accvgpr_write_b32", ONES[i], V(13))
        for f in s.zero_fillers(): f()
        s.stamp(1)
        p.s("s_mov_b32", sNeed, s.req([("W", 0), ("X", 0)]))
        s.flag_read(); p.wait(lg=0); s.check("init")
        s.stamp(2)
        s.prime(s.treads('WX', 0, 0), s.treads('WX', 0, 1)); s.ncarry = 8
        for n in range(8):
            p.cmt(f"---- P0 tile {n}")
            zf = [(lambda i=i: p.v("v_accvgpr_write_b32", A(i), 0)) for i in range(12 * n, 12 * n + 12)]
            if n < 7: nr = s.w2(); need = s.req([("W", n + 1), ("X", n + 1)])
            else: nr = s.k2(); need = s.req([("K", 0)])
            s.qp_tile(n, nr, need, zf)
        for f in s.qconv1_fillers(): f()
        p.wait(vm=0)
        p.s("s_cmp_eq_u32", sWave, 0); p.br("s_cbranch_scc0", "L_nononce2")
        p.v("v_readfirstlane_b32", sT1, V(130))
        p.s("s_cmp_eq_u32", sT1, 0); p.s("s_cselect_b32", sNon, sNon, sT1)
        p.v("v_mov_b32", V(130), sNon)
        p.ds_write("ds_write_b32", vZ, V(130), FLAGS - 131072 + 28)
        p.label("L_nononce2")
        s.stamp(3)
        s.task(0)
        s.qconv2()
        s.task(1)
        s.tail()
        s.stamp(13); s.stamp(14, True)
        s.stamp_out()
        p.br("s_branch", "L_k1_end")
        p.label("L_oload")
        s.poll_issue(0, sPo); p.wait(vm=0); s.poll_check(0, sPo)
        p.v("v_add_u32", V(12), 131072, vO); p.v("v_add_u32", V(13), 262144, vO)
        sv = list(vOr); vOr[1] = V(12); vOr[2] = V(13)
        for n in range(4):
            for f in s.oloads(n): f()
        vOr[:] = sv
        p.br("s_branch", "L_oload_back")
        for tag in s.spins:
            p.label(f"L_spin_{tag}")
            s.bound()
            s.flag_read(); p.wait(lg=0)
            p.v("v_readfirstlane_b32", sF, vFl)
            p.s("s_cmp_ge_u32", sF, sNeed)
            p.br("s_cbranch_scc0", f"L_spin_{tag}")
            p.br("s_branch", f"L_spun_{tag}")
        for tag, nx in s.stubs:
            p.label(f"L_stub_{tag}")
            p.gen(f"s_call_b64 {sRet}, L_rare{nx}", "salu", [sRet])
            p.br("s_branch", f"L_back_{tag}")
        for nx in range(2):
            p.label(f"L_rare{nx}")
            p.nop(10)
            s.rescale(nx, False)
            p.nop(4)
            p.gen(f"s_setpc_b64 {sRet}", "branch", [], [sRet])
        for tag, field, word in s.gspins:
            p.label(f"L_gspin_{tag}")
            s.bound()
            p.gen("s_sleep 1", "salu")
            s.poll_issue(field, word); p.wait(vm=0)
            s.poll_test()
            p.br("s_cbranch_scc0", f"L_gspin_{tag}")
            p.br("s_branch", f"L_gspun_{tag}")
        p.label("L_loader")
        p.s("s_lshl_b32", so, sNc, 8); p.s("s_sub_u32", so2, 4194304, so)
        s.srd(SRD_WO, ptr(4), so, so2)
        p.v("v_bfe_u32", t2, vLane, 2, 2); p.v("v_add_u32", t1, sKg, g); p.v("v_and_b32", t1, 3, t1); p.v("v_lshlrev_b32", t1, 6, t1)
        p.v("v_lshl_add_u32", t1, t2, 10, t1); p.v("v_lshl_add_u32", vDu[0], x4, 4, t1)
        p.v("v_xor_b32", vDu[2], 16, vDu[0])
        p.v("v_add_u32", vDu[1], 15 * 1024, vDu[0]); p.v("v_add_u32", vDu[3], 17 * 1024, vDu[2]); p.v("v_add_u32", vDu[2], 2 * 1024, vDu[2])
        stamp_init()
        s.loader()
        p.label("L_k1_end")
        p.gen("s_endpgm", "branch")
        return p
vZ = V(251)

def one(fn, **o):
    k = K1(o); p = k.build(NAME + "_kernel")
    print(fn, "instrs", p.count(), "auto nops", p.nops, "over", k.over, file=sys.stderr)
    open(fn, "w").write(G1.assemble(["; @launch grid=(256,1,1) block=(256,1,1) lds=163840"], [p], [kdesc(NAME + "_kernel")]))
def full(fn, o1=None, o2=None):
    k = K1(o1); p1 = k.build("attn_kernel"); p2 = G1.build_k2("oproj_kernel", o2)
    t = G1.assemble(["; @launch kernel=attn_kernel grid=(256,1,1) block=(256,1,1) lds=163840",
                  "; @launch kernel=oproj_kernel grid=(256,1,1) block=(256,1,1) lds=147456"], [p1, p2],
                 [kdesc("attn_kernel"), kdesc("oproj_kernel", vgpr=256, accum=256)])
    open(fn, "w").write(t)
if __name__ == "__main__":
    R = dict(rot="h")
    one("v4.s", **R)
    one("v4stamp.s", stamps=True, **R)
    one("v4fine.s", stamps=True, fine=True, **R)
```

```python
import sys, math, struct
from asmlib import *
import gen as G1
NAME = G1.NAME
f2u = G1.f2u
TILE = 16384; XT = 18432
NKS, NVS = 5, 4
KRING, VRING = 0, 5 * TILE
X0RING = 7 * TILE
FLAGS = 148 * 1024
PHI = [0, 2, 3, 1]
def kslot(n): return KRING + (n % NKS) * TILE
def vslot(n): return VRING + (n % NVS) * TILE
def wslot(n): return [2, 6, 3, 4][n % 4] * TILE
def xslot(e): return X0RING + (e % 2) * XT
TO = [0, 1, 8, 9, 2, 3, 4, 5, 6, 7, 10, 11, 12, 13, 14, 15]
USL = [("K", 27), ("K", 28), ("K", 29), ("V", 28), ("K", 30), ("V", 29), ("K", 31), ("V", 30), ("V", 31)]
def uslot(n):
    k, m = USL[TO.index(n) % 9]
    return kslot(m) if k == "K" else vslot(m)
vLane = V(0); vKbase = V(1); vTbase = V(2); vK = V(3); vV = V(4); vW = V(5)
vW1 = V(11); vV1 = V(6); vXa = V(7); vVbase = V(8); vO = V(9); vMx = V(10); vXbase = V(129)
vFl = V(248); vLf = V(30); vLz = V(40); vFa = V(249); vEp = V(250)
vDx = [V(20 + i) for i in range(4)]; vDk = [V(24 + i) for i in range(4)]; vDv = [V(28), V(29)]; vDw = [V(36 + i) for i in range(4)]
def stage_regs(i): return V(64 + 64 * i, 64) if i < 3 else A(64 * (i - 3), 64)
TMP = [V(12 + i) for i in range(8)]
TQ = [V(12, 4), V(16, 4), V(252, 4)]
def negm(t): return V(20 + 4 * t, 4)
SB = [32, 80]
def Sq(b, al, t): return V(SB[b] + (al * 3 + t) * 4, 4)
def Pq(ks, t): return V(128 + (ks * 3 + t) * 4, 4)
def Oq(u, t): return V(152 + (u * 3 + t) * 4, 4)
def QP1(u, t): return V(32 + (u * 3 + t) * 4, 4)
def QP2(u, t): return A((u * 3 + t) * 4, 4)
QBASE = [96]
def Qf(t, s): return A(QBASE[0] + (t * 4 + s) * 4, 4)
def Qf2(t, s): return A((s * 3 + t) * 4, 4)
QSEL = [0]
def Qcur(t, s): return (Qf, Qf2)[QSEL[0]](t, s)
def Abuf(par): return A(144 + 16 * (par & 3), 16)
def Xf(ks, t): return A(208 + (ks * 3 + t) * 4, 4)
def Lq(t): return A(232 + 4 * t, 4)
ONES = A(244, 4)
sWave = S(3)
SRD_X = S(16, 4); SRD_K = S(24, 4); SRD_V = S(28, 4); SRD_WQ = S(40, 4); SRD_WS = S(48, 4)
sK = S(52); sV = S(53); sNeed = S(54); sCnt = S(55); sF = S(56); sThr = S(57)
sC = S(58, 2); sRet = S(60, 2); sT0 = S(62); sT1 = S(63); sRot = S(20); sWr = S(21); sXr = S(22); sPub = S(23); sSpin = S(32); sKV = [S(33), S(34)]; sWo = [S(35), S(36)]; sOo = [S(37), S(38)]; sOdd = S(46, 2)
SRD_OR = S(16, 4); SRD_PT = S(24, 4); SRD_OUT = S(28, 4); SRD_DBG = S(40, 4); SRD_WO = S(48, 4)
sOH = [[S(20), S(21), S(22), S(23)], [S(33), S(34), S(35), S(36)]]
sKg = S(4); sNc = S(5); sPar = S(8); sPB = S(9); sPo = S(10); sPl = S(11)
vDu = [V(44 + i) for i in range(4)]
vOr = [V(9), V(7), V(19)]; vPl4 = V(252, 4); vPoll = V(252); vOne = V(253); vOut = V(134)
FLAGOFF = 2 * 18874368; sNon = S(39); sFo = S(44); sFl = S(45); sPb1 = S(45); sPm = S(44); sOc = S(96); sTm = S(97)
OFB = {8: 32, 9: 56, 2: 80, 3: 104, 4: 128, 5: 152, 6: 176, 7: 200, 10: 224, 11: 32, 12: 56, 13: 80, 14: 104, 15: 128}
def Of(n, ks, t):
    if n < 2: return A(48 + (n * 6 + ks * 3 + t) * 4, 4)
    return V(OFB[n] + (ks * 3 + t) * 4, 4)
def OPa(u, t):
    i = u * 3 + t
    return A(4 * i, 4) if i < 12 else A(96 + 4 * (i - 12), 4)
PARTOFF = 18874368
CSCALE = G1.CSCALE; THR = 16.0

PLANS = {}
class K1:
    def __init__(s, opts=None):
        s.p = Prog(); s.par = 0; s.over = []; s.vmlog = []; s.gspins = []; s.hookcost = {}; s.stubs = []; s.spins = []; s.o = opts or {}
        s.NT = s.o.get("kvflag", " nt")
        if s.o.get("nomfma"): s.p.mfma = lambda *a, **k: None
        if s.o.get("nods"): s.p.ds_read = lambda *a, **k: None
        if s.o.get("lin"):
            od = s.p.ds_read
            s.p.ds_read = lambda op, d, addr, off: od(op, d, vO if op != "ds_read_b32" else addr, off)
        if s.o.get("noexp"):
            ov = s.p.v
            def vv(op, *a, **k):
                if op in ("v_exp_f32", "v_cvt_pk_bf16_f32", "v_max3_f32"): return
                ov(op, *a, **k)
            s.p.v = vv
        s.stream()
    def stream(s):
        rel = {}; ep = 0
        for n in range(16):
            ep += 1; rel[("W", n)] = ep
            if n % 2 == 0: rel[("X", n // 2)] = ep
        for J in range(32):
            ep += 1; rel[("V", J)] = ep
            if J % 16 < 15: rel[("K", J + 1)] = ep
            if J % 16 == 0: rel[("K", J)] = ep
        for n in TO:
            ep += 1; rel[("U", n)] = ep
        def need(k, n):
            if k == "U":
                j = TO.index(n)
                return rel[("U", TO[j - 9])] if j >= 9 else rel[USL[j]]
            if k == "W": return rel[("W", n - 4)] if n >= 4 else 0
            if k == "X": return rel[("X", n - 2)] if n >= 2 else 0
            if k == "K": return [0, 0, rel[("W", 12)], rel[("W", 14)], rel[("W", 15)]][n] if n < 5 else rel[("K", n - 5)]
            return [0, rel[("W", 13)], rel[("X", 6)], rel[("X", 7)]][n] if n < 4 else rel[("V", n - 4)]
        staged = s.o.get("staged", [])
        spos = s.o.get("spos", [3, 5, 7, 8, 9, 10, 11])
        T = []
        for n in range(16):
            if n % 2 == 0: T.append(("dma", "X", n // 2))
            T.append(("dma", "W", n))
            kv0 = s.o.get("kvpos", {5: ("K", 0), 8: ("K", 1), 11: ("V", 0)})
            if n in kv0: T.append(("dma",) + kv0[n])
        s.nP0 = len(T)
        names = [("K", 2), ("V", 1), ("V", 2), ("K", 3), ("V", 3), ("K", 4), ("V", 4)]
        for n in range(5, 32): names += [("K", n), ("V", n)]
        skip = s.o.get("skip", 4); nw = 0
        reg = {t: i for i, t in enumerate(staged)}
        nxt = (max(names.index(t) for t in staged) + 1) if staged else len(names)
        for t in names:
            if t in reg:
                T.append(("write",) + t); nw += 1
                if nw % skip != 0 and nxt < len(names):
                    reg[names[nxt]] = reg[t]; T.append(("stage",) + names[nxt]); nxt += 1
            else: T.append(("dma",) + t)
        nus = s.o.get("nus", 0)
        ust = TO[s.o.get("us0", 0):][:nus]
        at = T.index(("dma",) + s.o.get("usat", ("K", 21)))
        T[at:at] = [("stage", "U", n) for n in ust]
        for i, n in enumerate(ust): reg[("U", n)] = i
        T += [("write" if n in ust else "dma", "U", n) for n in TO]
        s.reg = reg; s.pairs = set()
        s.T = [(op, k, n, 0 if op == "stage" else need(k, n)) for op, k, n in T]
        s.pos = {}
        for op, k, n, _ in s.T:
            if op != "stage": s.pos[(k, n)] = len(s.pos)
        s.P = s.pos[("K", 5)] - 6
        for J in list(range(14)) + list(range(16, 30)):
            assert s.req([("K", J + 2), ("V", J + 1)]) <= s.P + 2 * J + 1, J
    def req(s, tiles): return 1 + max(s.pos[t] for t in tiles)
    def stamp(s, i, fine=False):
        if s.o.get("iter"):
            if i in (6, 11): s.p.gen(f"s_memtime {S(64 + 14 + (16 if i == 11 else 0), 2)}", "smem")
            return
        if s.o.get("stamps") and bool(s.o.get("fine")) == fine: s.p.gen(f"s_memtime {S(64 + 2 * i, 2)}", "smem", [S(64 + 2 * i, 2)])
    def stamp_out(s):
        if not s.o.get("stamps"): return
        p = s.p
        p.wait(lg=0)
        if s.o.get("entry"):
            p.s("s_sub_u32", S(100), S(64), S(100)); p.s("s_add_u32", S(64 + 30), S(100), S(64))
        elif not s.o.get("iter"): p.s("s_add_u32", S(64 + 30), sSpin, S(64))
        p.v("v_mov_b32", V(1), 0)
        for i in range(16):
            p.v("v_mov_b32", V(2), S(64 + 2 * i))
            p.bstore(V(2), V(1), S(12, 4), 0, 4 * i, op="buffer_store_dword")
    def flag_read(s): s.p.ds_read("ds_read_b32", vFl, vFa, 0) if False else s.p.ds_read("ds_read_b32", vFl, vZ, FLAGS - 131072)
    def release(s):
        p = s.p
        p.ds_write("ds_write_b32", vFa, vEp, 0)
        p.v("v_add_u32", vEp, 1, vEp)
    def check(s, tag):
        p = s.p
        if s.o.get("nochk"): return
        p.v("v_readfirstlane_b32", sF, vFl)
        p.s("s_cmp_ge_u32", sF, sNeed)
        p.br("s_cbranch_scc0", f"L_spin_{tag}")
        p.label(f"L_spun_{tag}")
        s.spins.append(tag)
    def bound(s):
        p = s.p
        p.s("s_add_u32", sSpin, sSpin, 1); p.s("s_cmp_gt_u32", sSpin, 1 << 22); p.br("s_cbranch_scc1", "L_k1_end")
    def kreads(s, al):
        ks, a = al >> 1, al & 1
        return [lambda buf, sx=sx: s.p.ds_read("ds_read_b128", buf[4 * sx:4 * sx + 4], vK, (8 * ks + a) * 1024 + 256 * sx) for sx in range(4)]
    def treads(s, addr, ks, half):
        out = []
        for uu in range(4):
            u = 4 * half + uu; sp, ap = u >> 1, u & 1
            for a in range(2):
                if addr == 'V':
                    out.append(lambda buf, uu=uu, a=a, sp=sp, ap=ap: s.p.ds_read("ds_read_b64_tr_b16", buf[4 * uu + 2 * a:4 * uu + 2 * a + 2],
                                                                         (vV, vV1)[ap], (8 * ks + a) * 1024 + 256 * sp))
                else:
                    out.append(lambda buf, uu=uu, a=a, sp=sp, ap=ap: s.p.ds_read("ds_read_b64_tr_b16", buf[4 * uu + 2 * a:4 * uu + 2 * a + 2],
                                                                         (vW, vW1)[ap], (8 * ks + a) * 1024 + 256 * sp))
        if addr == 'WX' and half == 0:
            for t in range(3):
                out.append(lambda buf, t=t: s.p.ds_read("ds_read_b128", Xf(ks, t), vXa, t * 2048 + ks * 512))
        return out
    def kbatch(s, al, sb, czero=False):
        mf = []
        for sx in range(4):
            for t in range(3):
                D = Sq(sb, al, t)
                C = (0 if czero else negm(t)) if sx == 0 else D
                mf.append(lambda buf, D=D, C=C, sx=sx, t=t: s.p.mfma(D, buf[4 * sx:4 * sx + 4], Qcur(t, sx), C))
        return dict(reads=s.kreads(al), mf=mf)
    def tbatch(s, addr, ks, half, acc, bop, withl=False, czero=False):
        mf = []
        for t in range(3):
            for uu in range(4):
                D = acc(4 * half + uu, t)
                mf.append(lambda buf, D=D, uu=uu, t=t: s.p.mfma(D, buf[4 * uu:4 * uu + 4], bop(ks, t), 0 if czero else D))
            if withl: mf.append(lambda buf, t=t: s.p.mfma(Lq(t), ONES, bop(ks, t), Lq(t)))
        return dict(reads=s.treads(addr, ks, half), mf=mf)
    def prime(s, r0, r1):
        for f in r0: f(Abuf(0))
        for f in r1: f(Abuf(1))
    def plan(s, nslot, items, waits):
        at = {}
        pre = [[] for _ in range(nslot + 1)]; post = [[] for _ in range(nslot)]
        ds = [it for it in items if it["ds"]]; nd = [it for it in items if not it["ds"]]
        fill = [0] * (nslot + 1)
        dsi = 0
        def ready(it, slot):
            if it["id"] in at or it["est"] > slot: return False
            for d in it["deps"]:
                if at.get(d["id"], 10 ** 9) >= slot: return False
            pv = it.get("prev")
            return pv is None or pv["id"] in at
        for slot in range(nslot):
            for it in nd:
                if it["id"] not in at and it.get("hard") is not None and it["hard"] <= slot:
                    chain = [it]
                    while chain[-1].get("prev") is not None and chain[-1]["prev"]["id"] not in at: chain.append(chain[-1]["prev"])
                    for c in reversed(chain):
                        for d in c["deps"]:
                            if d["id"] not in at:
                                if d["ds"]: return None
                                at[d["id"]] = slot - 1; pre[slot].append(d); fill[slot] += d["cost"]
                        at[c["id"]] = slot - 1; pre[slot].append(c); fill[slot] += c["cost"]
            if slot in waits:
                if any(it["grp"] == waits[slot] and it["id"] not in at for it in ds): return None
                lead = min([slot - at[it["id"]] for it in ds if it["grp"] == waits[slot]] or [99])
                fill[slot] += max(0, (s.o.get("lead", 7) - lead)) * 16
            fixedc = (4 if (slot + 1) in waits else 0) + 4 * s.hookcost.get(slot + 1, 0)
            budget = 8 - fixedc; fill[slot + 1] += fixedc
            if dsi < len(ds) and ds[dsi]["slot"] <= slot and ds[dsi]["est"] <= slot:
                it = ds[dsi]; dsi += 1; at[it["id"]] = slot; post[slot].append(it); budget -= 4; fill[slot + 1] += 4
            while budget > 0:
                c = [it for it in nd if it["cost"] <= budget and ready(it, slot)]
                if not c: break
                it = min(c, key=lambda x: (x["dl"], x["id"]))
                if it["cost"] == 4 and budget == 8 and len([x for x in c if x["cost"] == 4]) < 2 and any(x["cost"] == 8 for x in c):
                    it = min([x for x in c if x["cost"] == 8], key=lambda x: (x["dl"], x["id"]))
                at[it["id"]] = slot; post[slot].append(it); budget -= it["cost"]; fill[slot + 1] += it["cost"]
        for it in items:
            if it["id"] not in at:
                pre[nslot].append(it); fill[nslot] += it["cost"] + (8 if it["ds"] else 0)
        for g, extra in (("N0", 0), ("N1", 4)):
            l = [nslot + extra - at.get(it["id"], nslot) for it in ds if it["grp"] == g]
            if l: fill[nslot] += max(0, s.o.get("lead", 7) - min(l)) * 16
        cost = sum(max(16, 8 + f) for f in fill[1:]) + fill[0]
        return cost, pre, post
    def sched(s, mf, items, waits, hooks=None, carry=None, opt=None):
        p = s.p; hooks = hooks or {}; carry = carry or {}
        last = {}
        for i, it in enumerate(items):
            it.setdefault("deps", []); it.setdefault("ds", False); it.setdefault("grp", None); it["id"] = i
            if it.get("seq"):
                it["prev"] = last.get(it["seq"]); last[it["seq"]] = it
        ds = [it for it in items if it["ds"]]
        best = s.plan(len(mf), items, waits)
        if opt:
            key = (opt, len(ds))
            if key in PLANS:
                for it, sl in zip(ds, PLANS[key]): it["slot"] = sl
                best = s.plan(len(mf), items, waits)
            else:
                import random
                rnd = random.Random(1)
                for itn in range(s.o.get("optit", 1500)):
                    it = rnd.choice(ds); old = it["slot"]
                    it["slot"] = max(it["est"], min(len(mf) - 1, old + rnd.choice([-3, -2, -1, 1, 2, 3])))
                    r = s.plan(len(mf), items, waits)
                    if r is not None and r[0] <= best[0]: best = r
                    else: it["slot"] = old
                PLANS[key] = [it["slot"] for it in ds]
        cost, pre, post = best
        dslog = []
        def emit(it):
            it["fn"]()
            if it["ds"]: dslog.append(it["grp"])
        for slot, m in enumerate(mf):
            for it in pre[slot]: emit(it)
            if slot in waits:
                g = waits[slot]
                if g in dslog: n = len(dslog) - 1 - max(i for i, x in enumerate(dslog) if x == g)
                else: n = carry[g] + len(dslog)
                if not s.o.get("nowait"): p.wait(lg=min(n, 15))
            for h in hooks.get(slot, ()):
                if h() == "ds": dslog.append(None)
            m()
            for it in post[slot]: emit(it)
        for it in pre[len(mf)]: emit(it)
        s.over.append(cost)
    def rd_items(s, reads, buf, grp, est, dl, e0=None):
        n = len(reads)
        return [dict(fn=(lambda f=f: f(buf)), cost=4, ds=True, est=(est if e0 is None else e0), slot=est + ((dl - est + 1) * i) // n, dl=0, grp=grp) for i, f in enumerate(reads)]
    def misc_items(s, ops, est, dl, seq):
        n = len(ops)
        return [dict(fn=f, cost=4, est=est, dl=est + (dl - est) * (i + 1) / n, hard=dl + 1, seq=seq) for i, f in enumerate(ops)]
    def ring_adv(s, sreg, n, base, vdst, vbase):
        p = s.p
        return [lambda: p.s("s_add_u32", sreg, sreg, TILE),
                lambda: (p.s("s_cmp_eq_u32", sreg, base + n * TILE), p.s("s_cselect_b32", sreg, base, sreg)),
                lambda: p.v("v_add_u32", vdst, sreg, vbase)]
    def kmf(s, sb, czero=False):
        mf = []
        for al in range(4):
            for sx in range(4):
                for t in range(3):
                    D = Sq(sb, al, t)
                    C = (0 if czero else negm(t)) if sx == 0 else D
                    mf.append(lambda al=al, D=D, C=C, sx=sx, t=t: s.p.mfma(D, Abuf(al)[4 * sx:4 * sx + 4], Qcur(t, sx), C))
        return mf
    def rel_hook(s):
        s.release(); return "ds"
    def step(s, cur, nxt, tag, qk=True, need=None, inc=2):
        p = s.p; nx = cur ^ 1
        o = 48 if qk else 0
        mf = s.kmf(nx) if qk else []
        for ks in range(2):
            for t in range(3):
                for u in range(8):
                    mf.append(lambda ks=ks, t=t, u=u: p.mfma(Oq(u, t), Abuf(2 * ks + (u >> 2))[4 * (u & 3):4 * (u & 3) + 4], Pq(ks, t), Oq(u, t)))
                mf.append(lambda ks=ks, t=t: p.mfma(Lq(t), ONES, Pq(ks, t), Lq(t)))
        I = []
        if qk:
            I += s.rd_items(s.kreads(2), Abuf(2), "A2", 1, 8, 0) + s.rd_items(s.kreads(3), Abuf(3), "A3", 9, 16, 0)
            I += s.rd_items(s.treads('V', 0, 0), Abuf(0), "V0", 17, 30, 12) + s.rd_items(s.treads('V', 0, 1), Abuf(1), "V1", 31, 43, 24)
            I += s.rd_items(s.treads('V', 1, 0), Abuf(2), "V2", 44, 55, 36) + s.rd_items(s.treads('V', 1, 1), Abuf(3), "V3", 56, 67, 48)
            I.append(dict(fn=s.flag_read, cost=4, ds=True, est=60, slot=68, dl=0, grp="FL"))
        else:
            I += s.rd_items(s.treads('V', 1, 0), Abuf(2), "V2", 0, 9) + s.rd_items(s.treads('V', 1, 1), Abuf(3), "V3", 10, 19)
        I += s.rd_items(nxt[0], Abuf(0), "N0", o + 38 - len(nxt[0]) // 2, o + 46, o + 27) + s.rd_items(nxt[1], Abuf(1), "N1", o + 47 - len(nxt[0]) // 2, o + 53, o + 27)
        span = s.o.get('span', 88) if qk else 40
        k = 0
        for ks in range(2):
            for t in range(3):
                hd = o + 27 * ks + 9 * t
                for a in range(2):
                    q = Sq(cur, 2 * ks + a, t); P = Pq(ks, t); E = []
                    for r in range(4):
                        k += 1
                        E.append(dict(fn=(lambda q=q, r=r: p.v("v_exp_f32", q[r], q[r])), cost=8, est=0, dl=min(hd - 3, span * k / 48.0), hard=hd))
                    I += E
                    for h in range(2):
                        I.append(dict(fn=(lambda q=q, P=P, a=a, h=h: p.v("v_cvt_pk_bf16_f32", P[2 * a + h], q[2 * h], q[2 * h + 1])), cost=4, est=0,
                                      dl=min(hd - 2, span * k / 48.0 + 1), hard=hd, deps=E[2 * h:2 * h + 2]))
        if qk:
            regs = [(al, Sq(nx, al, t)[r]) for al in range(4) for t in range(3) for r in range(4)]
            ops = [(0, lambda: p.v("v_max3_f32", vMx, regs[0][1], regs[1][1], regs[2][1]))]
            for i in range(3, 47, 2): ops.append((regs[i + 1][0], lambda i=i: p.v("v_max3_f32", vMx, vMx, regs[i][1], regs[i + 1][1])))
            ops.append((3, lambda: p.v("v_max_f32", vMx, vMx, regs[47][1])))
            for i, (al, f) in enumerate(ops): I.append(dict(fn=f, cost=4, est=12 * al + 16, dl=30 + 70 * (i + 1) / 24.0, seq="mx"))
            I += s.misc_items(s.ring_adv(sK, NKS, KRING, vK, vKbase), 24, 70, "rk")
            I += s.misc_items([(lambda: p.s("s_add_u32", sNeed, sNeed, inc)) if need is None else (lambda: p.s("s_mov_b32", sNeed, need))], 0, 70, "nd")
        vlast = [it for it in I if it.get("grp") == "V3"][-1]
        ra = s.misc_items(s.ring_adv(sV, NVS, VRING, vV, vVbase) + [lambda: p.v("v_xor_b32", vV1, 32, vV)], o + 0, o + 26, "rv")
        ra[2]["deps"] = [vlast]
        I += ra
        if qk: waits = {0: "C0", 12: "C1", 24: "A2", 36: "A3", 48: "V0", 52: "V1", 75: "FL"}
        else: waits = {0: "C0", 4: "C1", 27: "V2", 31: "V3"}
        if qk:
            hooks = {75: [s.rel_hook, lambda: s.check(tag)]}; s.hookcost = {75: 5}
        else:
            hooks = {31: [s.rel_hook]}; s.hookcost = {31: 2}
        s.sched(mf, I, waits, hooks, carry={"C0": s.ncarry, "C1": 0}, opt=("step", qk))
        s.ncarry = len(nxt[1])
        if qk:
            p.v("v_cmp_lt_f32", VCC, sThr, vMx)
            p.br("s_cbranch_vccnz", f"L_stub_{tag}", VCC.regs())
            p.label(f"L_back_{tag}")
            s.stubs.append((tag, nx))
    def qp_tile(s, n, nxt, need, fillers=()):
        p = s.p
        hd = n & 1; e = n // 2; acc = (QP1, QP2)[hd]; ad = 'WX' if hd == 0 else 'W'
        mf = []
        for ks in range(2):
            for h in range(2):
                for t in range(3):
                    for uu in range(4):
                        D = acc(4 * h + uu, t)
                        mf.append(lambda ks=ks, h=h, D=D, uu=uu, t=t: p.mfma(D, Abuf(2 * ks + h)[4 * uu:4 * uu + 4], Xf(ks, t), 0 if (n < 2 and ks == 0) else D))
        I = s.rd_items(s.treads(ad, 1, 0), Abuf(2), "B2", 0, 7) + s.rd_items(s.treads(ad, 1, 1), Abuf(3), "B3", 8, 15)
        I.append(dict(fn=s.flag_read, cost=4, ds=True, est=16, slot=16, dl=0, grp="FL"))
        I += s.rd_items(nxt[0], Abuf(0), "N0", 24, 31) + s.rd_items(nxt[1], Abuf(1), "N1", 32, 39)
        blast = [it for it in I if it.get("grp") == "B3"][-1]
        ops = [lambda: p.s("s_mov_b32", sNeed, need)]
        if n < 15: ops += [lambda: p.v("v_add_u32", vW, wslot(n + 1), vTbase), lambda: p.v("v_xor_b32", vW1, 8, vW)]
        if hd == 1 and n < 15: ops.append(lambda: p.v("v_add_u32", vXa, xslot(e + 1), vXbase))
        M = s.misc_items(ops, 0, 23, "m")
        for m in M[1:]: m["deps"] = [blast]
        I += M
        I += [dict(fn=f, cost=4, est=2, dl=100 + i, seq="f") for i, f in enumerate(fillers)]
        s.hookcost = {24: 5}
        s.sched(mf, I, {0: "C0", 12: "C1", 24: "FL"}, {24: [s.rel_hook, lambda: s.check(f"p{n}")]}, carry={"C0": s.ncarry, "C1": 0})
        s.ncarry = len(nxt[1])
    def w2(s): return [s.treads('WX', 0, 0), s.treads('WX', 0, 1)]
    def rescale(s, sb, init):
        p = s.p
        m = [TMP[0], TMP[1], TMP[2]]; tm = TMP[3]; f = [TMP[4], TMP[5], TMP[6]]
        for t in range(3):
            r = [Sq(sb, al, t)[i] for al in range(4) for i in range(4)]
            p.v("v_max3_f32", m[t], r[0], r[1], r[2])
            for i in range(3, 15, 2): p.v("v_max3_f32", m[t], m[t], r[i], r[i + 1])
            p.v("v_max_f32", m[t], m[t], r[15])
        for op in ("v_permlane32_swap_b32", "v_permlane16_swap_b32"):
            for t in range(3):
                p.v("v_mov_b32", tm, m[t]); p.v(op, m[t], tm); p.v("v_max_f32", m[t], m[t], tm)
        for t in range(3):
            if not init:
                p.v("v_max_f32", m[t], 0, m[t])
                p.gen(f"v_exp_f32 {f[t]}, -{m[t]}", "trans", [f[t]], [m[t]])
            for i in range(4):
                if init: p.v("v_sub_f32", negm(t)[i], 0, m[t])
                else: p.v("v_sub_f32", negm(t)[i], negm(t)[i], m[t])
            for al in range(4):
                for i in range(4): p.v("v_sub_f32", Sq(sb, al, t)[i], Sq(sb, al, t)[i], m[t])
            if not init:
                for u in range(8):
                    for i in range(4): p.v("v_mul_f32", Oq(u, t)[i], f[t], Oq(u, t)[i])
                for i in range(4):
                    p.v("v_accvgpr_read_b32", tm, Lq(t)[i]); p.v("v_mul_f32", tm, f[t], tm); p.v("v_accvgpr_write_b32", Lq(t)[i], tm)
    def qconv_ops(s, q0, q1, dst):
        p = s.p; L = []
        for q in (q0, q1):
            for h in range(2): L.append(lambda q=q, h=h: p.v("v_pk_mul_f32", q[2 * h:2 * h + 2], q[2 * h:2 * h + 2], sC))
        for q in (q0, q1):
            for h in range(2): L.append(lambda q=q, h=h: p.v("v_cvt_pk_bf16_f32", q[2 * h], q[2 * h], q[2 * h + 1]))
        for h in range(2):
            L.append(lambda h=h: p.v("v_cndmask_b32", q0[2 * h + 1], q0[2 * h], q1[2 * h], sOdd))
            L.append(lambda h=h: p.v("v_cndmask_b32", q1[2 * h + 1], q1[2 * h], q0[2 * h], sOdd))
        for h in range(2): L.append(lambda h=h: p.v("v_accvgpr_write_b32", dst[h], q0[2 * h + 1]))
        for h in range(2): L.append(lambda h=h: p.v("v_accvgpr_write_b32", dst[2 + h], q1[2 * h + 1]))
        return L
    def qconv1_fillers(s):
        F = []
        for t in range(3):
            for sx in range(4):
                F += [f for f in s.qconv_ops(QP1(2 * sx, t), QP1(2 * sx + 1, t), Qf(t, sx))]
        return F
    def qconv2(s):
        p = s.p
        for sx in range(4):
            for t in range(3):
                t8 = V(12, 8)
                for a in range(2):
                    for i in range(4): p.v("v_accvgpr_read_b32", t8[4 * a + i], QP2(2 * sx + a, t)[i])
                for f in s.qconv_ops(t8[0:4], t8[4:8], Qf2(t, sx)): f()
    def zero_fillers(s):
        p = s.p; F = []
        for u in range(8):
            for t in range(3):
                for i in range(4): F.append(lambda u=u, t=t, i=i: p.v("v_mov_b32", Oq(u, t)[i], 0))
        for t in range(3):
            for i in range(4): F.append(lambda t=t, i=i: p.v("v_accvgpr_write_b32", Lq(t)[i], 0))
        return F
    def epi_ops(s, task):
        p = s.p; L = []
        inv = V(20, 2)
        for t in range(3):
            L.append(lambda t=t: p.v("v_accvgpr_read_b32", inv[0], Lq(t)[0]))
            L.append(lambda: p.v("v_rcp_f32", inv[0], inv[0]))
            if task == 1: L.append(lambda t=t: p.s("s_add_u32", sT0, sOo[1], t * 131072))
            for sx in range(4):
                q = TQ[(t * 4 + sx) % 3] if task == 0 else Of(8 + (sx >> 1), sx & 1, t)
                for a in range(2):
                    o = Oq(2 * sx + a, t)
                    for h in range(2): L.append(lambda o=o, h=h: p.v("v_pk_mul_f32", o[2 * h:2 * h + 2], o[2 * h:2 * h + 2], inv, extra=" op_sel_hi:[1,0]"))
                for a in range(2):
                    o = Oq(2 * sx + a, t)
                    for h in range(2): L.append(lambda o=o, h=h, q=q, a=a: p.v("v_cvt_pk_bf16_f32", q[2 * a + h], o[2 * h], o[2 * h + 1]))
                if task == 0:
                    for i in range(4): L.append(lambda i=i, q=q, sx=sx, t=t: p.v("v_accvgpr_write_b32", Of(sx >> 1, sx & 1, t)[i], q[i]))
                else:
                    L.append(lambda q=q, sx=sx: (p.bstore(q, vO, SRD_WS, sT0, sx * 1024, " sc1"), s.vmlog.append("st")))
        return L
    def store_r1(s):
        p = s.p
        for t in range(3):
            p.s("s_add_u32", sT0, sOo[0], t * 131072)
            for sx in range(4): p.bstore(Of(sx >> 1, sx & 1, t), vO, SRD_WS, sT0, sx * 1024, " sc1")
    def k2(s): return [s.kreads(0), s.kreads(1)]
    def prologue(s, task, fillers=()):
        p = s.p
        need = s.req([("K", 16 * task + 1), ("V", 16 * task)])
        I = s.rd_items(s.kreads(2), Abuf(2), "A2", 0, 5) + s.rd_items(s.kreads(3), Abuf(3), "A3", 6, 11)
        I.append(dict(fn=s.flag_read, cost=4, ds=True, est=14, slot=14, dl=0, grp="FL"))
        I += s.rd_items(s.kreads(0), Abuf(0), "N0", 24, 31) + s.rd_items(s.kreads(1), Abuf(1), "N1", 32, 39)
        alast = [it for it in I if it.get("grp") == "A3"][-1]
        M = s.misc_items([lambda: p.s("s_mov_b32", sNeed, need)] + s.ring_adv(sK, NKS, KRING, vK, vKbase), 0, 23, "m")
        M[3]["deps"] = [alast]
        I += M
        I += [dict(fn=f, cost=4, est=0, dl=100 + i, seq="f") for i, f in enumerate(fillers)]
        s.hookcost = {24: 3}
        s.sched(s.kmf(0, czero=True), I, {0: "C0", 12: "C1", 24: "FL"}, {24: [lambda: s.check(f"pro{task}")]}, carry={"C0": s.ncarry, "C1": 0})
        s.ncarry = 4
        s.rescale(0, True)
    def task(s, task):
        p = s.p
        QSEL[0] = task
        s.stamp(4 + 5 * task)
        s.prologue(task, s.zero_fillers() if task == 1 else ())
        s.stamp(5 + 5 * task)
        p.s("s_mov_b32", sCnt, 0)
        p.s("s_mov_b32", sNeed, s.P + 32 * task - 1)
        def loop(name, count, body):
            p.raw(".p2align 6")
            p.label(name)
            p.nop(2)
            if s.o.get("iter"):
                p.gen("s_memtime s[100:101]", "smem"); p.wait(lg=0)
                p.s("s_lshl_b32", M0, sCnt, 1); p.nop(1)
                p.gen(f"s_movreld_b32 s{64 + 16 * task}, s100", "salu")
            body()
            p.s("s_add_u32", sCnt, sCnt, 1)
            if task == 0:
                p.s("s_cmp_eq_u32", sCnt, s.o.get("qc2at", 5)); p.br("s_cbranch_scc1", "L_qconv2")
                p.label("L_qconv2_back")
            else:
                p.s("s_cmp_eq_u32", sCnt, s.o.get("stat", 2)); p.br("s_cbranch_scc1", "L_str1")
                p.s("s_cmp_eq_u32", sCnt, s.o.get("stat", 2) + 2); p.br("s_cbranch_scc1", "L_dosig0")
                p.label("L_str1_back")
            p.s("s_cmp_lt_u32", sCnt, count)
            p.br("s_cbranch_scc1", name)
        def body():
            s.step(0, s.k2(), f"t{task}e"); s.step(1, s.k2(), f"t{task}o")
        loop(f"L_loop{task}", 7, body)
        s.stamp(6 + 5 * task)
        if task == 1: s.poll_issue(0, sPo)
        if task == 1:
            p.v("v_add_u32", vW, uslot(TO[0]), vTbase); p.v("v_xor_b32", vW1, 8, vW)
            p.v("v_add_u32", vOr[1], 131072, vO); p.v("v_add_u32", vOr[2], 262144, vO)
        s.step(0, [s.treads('V', 0, 0), s.treads('V', 0, 1)], f"t{task}x", need=s.req([("V", 16 * task + 15)] + ([("U", TO[0])] if task else [])))
        s.step(1, s.u2() if task else [[], []], f"t{task}z", qk=False)
        s.stamp(7 + 5 * task)
        if task == 0:
            for f in s.epi_ops(0): f()
        s.stamp(8 + 5 * task)
    def nonce_load(s):
        p = s.p
        p.gen("s_mov_b64 exec, 1", "salu")
        p.gen(f"global_load_dword {vPl4[2]}, {vO}, s[98:99] sc1", "vmem", [vPl4[2]], [vO, S(98, 2)])
        p.gen("s_mov_b64 exec, -1", "salu")
    def signal(s, field, word):
        p = s.p; tag = f"sig{field}"
        p.gen("s_mov_b64 exec, 1", "salu")
        p.v("v_mov_b32", vOne, 1)
        p.gen(f"ds_add_rtn_u32 {vPoll}, {vZ}, {vOne} offset:{FLAGS - 131072 + 4 + 4 * field}", "ds", [vPoll], [vZ, vOne])
        p.wait(lg=0)
        p.v("v_readfirstlane_b32", sT1, vPoll)
        p.s("s_cmp_eq_u32", sT1, 2)
        p.br("s_cbranch_scc0", f"L_{tag}")
        p.v("v_mov_b32", vPoll, sNon)
        p.bstore(vPoll, vO, SRD_DBG, word, field * 128, " sc1", op="buffer_store_dword")
        p.label(f"L_{tag}")
        p.gen("s_mov_b64 exec, -1", "salu")
    def poll_issue(s, field, word):
        p = s.p
        p.gen("s_mov_b64 exec, 1", "salu")
        p.bload(vPl4, vO, SRD_DBG, word, field * 128, " sc1")
        p.gen("s_mov_b64 exec, -1", "salu")
    def poll_test(s):
        p = s.p
        for i in range(4): p.v("v_xor_b32", vPl4[i], sNon, vPl4[i])
        p.v("v_or3_b32", vPl4[0], vPl4[0], vPl4[1], vPl4[2]); p.v("v_or_b32", vPl4[0], vPl4[0], vPl4[3])
        p.v("v_readfirstlane_b32", sT1, vPl4[0])
        p.s("s_cmp_eq_u32", sT1, 0)
    def poll_check(s, field, word):
        p = s.p; tag = f"pl{field}"
        s.poll_test()
        p.br("s_cbranch_scc0", f"L_gspin_{tag}")
        p.label(f"L_gspun_{tag}")
        s.gspins.append((tag, field, word))
    def oloads(s, n, dyn=False):
        p = s.p; r, i, half = n >> 3, (n >> 1) & 3, n & 1
        def ld(ks, t):
            if dyn: p.bload(Of(n, ks, t), vOr[t], SRD_OR, sOc, ks * 1024, " sc1")
            else: p.bload(Of(n, ks, t), vOr[t], SRD_OR, sOH[r][i], half * 2048 + ks * 1024, " sc1")
            s.vmlog.append(n)
        return [(lambda ks=ks, t=t: ld(ks, t)) for ks in range(2) for t in range(3)]
    def vmwait(s, tag):
        n = len(s.vmlog) - 1 - max(i for i, x in enumerate(s.vmlog) if x == tag)
        s.p.wait(vm=min(n, 63))
    def u2(s): return [s.treads('W', 0, 0), s.treads('W', 0, 1)]
    def next_oc(s):
        p = s.p
        return [lambda: p.s("s_lshr_b32", sOc, sTm, 1), lambda: p.s("s_add_u32", sOc, sOc, sNc), lambda: p.s("s_and_b32", sOc, sOc, 3),
                lambda: p.s("s_lshl_b32", sT1, sKg, 2), lambda: p.s("s_add_u32", sOc, sOc, sT1), lambda: p.s("s_lshl_b32", sOc, sOc, 13),
                lambda: p.s("s_add_u32", sOc, sOc, sOo[0]), lambda: p.s("s_and_b32", sT1, sTm, 1), lambda: p.s("s_lshl_b32", sT1, sT1, 11),
                lambda: p.s("s_add_u32", sOc, sOc, sT1), lambda: p.s("s_add_u32", sTm, sTm, 1)]
    def op_tile(s, n, nxt, nextu=None, loads=(), pre=(), misc=(), czero=False):
        p = s.p
        mf = []
        for ks in range(2):
            for h in range(2):
                for t in range(3):
                    for uu in range(4):
                        D = OPa(4 * h + uu, t)
                        mf.append(lambda ks=ks, h=h, D=D, uu=uu, t=t: p.mfma(D, Abuf(2 * ks + h)[4 * uu:4 * uu + 4], Of(n, ks, t), 0 if (czero and ks == 0) else D))
        I = s.rd_items(s.treads('W', 1, 0), Abuf(2), "B2", 0, 7) + s.rd_items(s.treads('W', 1, 1), Abuf(3), "B3", 8, 15)
        if nextu is not None: I.append(dict(fn=s.flag_read, cost=4, ds=True, est=16, slot=16, dl=0, grp="FL"))
        I += s.rd_items(nxt[0], Abuf(0), "N0", 24, 31) + s.rd_items(nxt[1], Abuf(1), "N1", 32, 39)
        blast = [it for it in I if it.get("grp") == "B3"][-1]
        if nextu is not None:
            M = s.misc_items([lambda: p.s("s_mov_b32", sNeed, s.req([("U", nextu)])), lambda: p.v("v_add_u32", vW, uslot(nextu), vTbase),
                              lambda: p.v("v_xor_b32", vW1, 8, vW)], 0, 23, "m")
            for m in M[1:]: m["deps"] = [blast]
            I += M
        if misc: I += s.misc_items(list(misc), 0, 20, "oc")
        I += [dict(fn=f, cost=4, est=e, dl=40 + i, seq="ld") for i, (f, e) in enumerate(loads)]
        s.hookcost = {24: 5 if nextu is not None else 2}
        hk = [s.rel_hook] + ([lambda: s.check(f"u{n}")] if nextu is not None else [])
        s.sched(mf, I, {0: "C0", 12: "C1", 24: "FL" if nextu is not None else "B3"}, {0: list(pre), 24: hk}, carry={"C0": s.ncarry, "C1": 0})
        s.ncarry = len(nxt[1])
    def tail(s):
        p = s.p
        s.stamp(0, True)
        r1 = [f for n in range(2, 8) for f in s.oloads(n)]
        r2 = {n: s.oloads(n) for n in range(10, 16)}
        pc = s.o.get("pc", 6)
        epi = s.epi_ops(1)
        for j, n in enumerate(TO):
            pre = []; loads = []
            if j >= 4: pre.append(lambda n=n: s.vmwait(n))
            if j == 0: pre += [lambda: p.wait(vm=0), lambda: s.poll_check(0, sPo)]; loads = [(f, 0) for f in epi[:58]]
            if j == 1: loads = [(f, 0) for f in epi[58:]]
            if j == 2: loads = [(f, 0) for f in r1[:18]]
            if j == 3: loads = [(f, 0) for f in r1[18:]]; pre += [lambda: s.vmwait("st"), lambda: s.signal(1, sFo)]
            if j == pc - 1: loads = loads + [(lambda: (s.poll_issue(1, sPo), s.vmlog.append("pl")), 40)]
            if j == pc: pre += [lambda: s.vmwait("pl"), lambda: s.poll_check(1, sPo)]
            if j == pc: loads = [(f, 0) for m in (10, 11, 12) for f in r2[m]]
            if j == pc + 1: loads = [(f, 0) for m in (13, 14) for f in r2[m]]
            if j == pc + 2: loads = [(f, 0) for f in r2[15]]
            last = j == len(TO) - 1
            s.op_tile(n, [[], []] if last else s.u2(), None if last else TO[j + 1], loads, pre, czero=(j == 0))
            if j in (0, 1, 2, 4, 6, 8, 10, 12): s.stamp(1 + (0, 1, 2, 4, 6, 8, 10, 12).index(j), True)
        s.stamp(14); s.stamp(9, True)
        p.s("s_mul_i32", sT0, sWave, 6144)
        for sx in range(1, 4):
            p.s("s_add_u32", sCnt, sKg, sx); p.s("s_and_b32", sCnt, sCnt, 3); p.s("s_mul_i32", sCnt, sCnt, 55296); p.s("s_add_u32", sCnt, sCnt, sT0)
            for t in range(3):
                p.s("s_add_u32", sT1, sCnt, (sx - 1) * 18432 + t * 2048)
                for a in range(2): p.bstore(OPa(2 * sx + a, t), vO, SRD_PT, sT1, a * 1024, " sc1")
        p.v("v_and_b32", vOut, 15, vLane); p.v("v_lshlrev_b32", vOut, 11, vOut); p.v("v_and_b32", V(135), 48, vLane); p.v("v_add_u32", vOut, vOut, V(135))
        for a in range(2):
            for t in range(3):
                for i in range(4): p.v("v_accvgpr_read_b32", QP1(a, t)[i], OPa(a, t)[i])
        s.stamp(10, True)
        p.wait(vm=0)
        s.stamp(11, True)
        s.signal(2, sFl)
        s.poll_issue(2, sPl); p.wait(vm=0)
        s.stamp(12, True)
        s.poll_check(2, sPl)
        s.stamp(13, True)
        p.s("s_mul_i32", sCnt, sKg, 55296); p.s("s_add_u32", sCnt, sCnt, sT0)
        Pt = lambda src, t, a: V(152 + ((t * 3 + src) * 2 + a) * 4, 4)
        for t in range(3):
            for src in range(3):
                p.s("s_add_u32", sT1, sCnt, src * 18432 + t * 2048)
                for a in range(2): p.bload(Pt(src, t, a), vO, SRD_PT, sT1, a * 1024, " sc1")
        for t in range(3):
            p.wait(vm=6 * (2 - t) + t)
            for a in range(2):
                for h in range(2):
                    q = [QP1(a, t)[2 * h:2 * h + 2]] + [Pt(src, t, a)[2 * h:2 * h + 2] for src in range(3)]
                    p.v("v_pk_add_f32", q[0], q[0], q[1]); p.v("v_pk_add_f32", q[2], q[2], q[3]); p.v("v_pk_add_f32", q[0], q[0], q[2])
            q0, q1 = QP1(0, t), QP1(1, t); o = Pt(0, t, 0)
            for q in (q0, q1):
                for h in range(2): p.v("v_cvt_pk_bf16_f32", q[2 * h], q[2 * h], q[2 * h + 1])
            for h in range(2):
                p.v("v_cndmask_b32", o[h], q0[2 * h], q1[2 * h], sOdd)
                p.v("v_cndmask_b32", o[2 + h], q1[2 * h], q0[2 * h], sOdd)
            p.s("s_mov_b32", sT1, t * 32768)
            p.bstore(o, vOut, SRD_OUT, sT1, 0)
    def dma_groups(s, kind, n, regs=None, alt=False):
        p = s.p; G = []
        sA = sT1 if alt else sT0
        if kind in "KV":
            lds = kslot(n) if kind == "K" else vslot(n); srd = SRD_K if kind == "K" else SRD_V
            def grp(q):
                if regs is None: p.s("s_mov_b32", M0, lds + q * 4096)
                p.s("s_add_u32", sA, sKV[n // 16], (n % 16) * TILE + q * 4096)
                for o in range(4):
                    b = 4 * q + o
                    vo = vDk[(b >> 1) & 3] if kind == "K" else vDv[(b >> 1) & 1]
                    if regs is None: p.dma(vo, srd, sA, o * 1024, s.NT)
                    else: p.bload(regs[4 * b:4 * b + 4], vo, srd, sA, o * 1024, s.NT)
            return [(lambda q=q: grp(q)) for q in range(4)], 16
        if kind == "U":
            r, i, half = n >> 3, (n >> 1) & 3, n & 1
            def grp(q):
                if q == 0:
                    p.s("s_add_u32", sWr, sNc, i); p.s("s_and_b32", sWr, sWr, 3); p.s("s_lshl_b32", sA, sKg, 2); p.s("s_add_u32", sWr, sWr, sA)
                    p.s("s_lshl_b32", sWr, sWr, 1); p.s("s_xor_b32", sA, sPar, r); p.s("s_add_u32", sWr, sWr, sA); p.s("s_lshl_b32", sWr, sWr, 17)
                if regs is None: p.s("s_mov_b32", M0, uslot(n) + q * 4096)
                p.s("s_add_u32", sA, sWr, half * 65536 + (32 * (q >> 1) + 8 * (q & 1)) * 1024)
                for o in range(4):
                    if regs is None: p.dma(vDu[o], SRD_WO, sA, o * 1024, s.o.get("wflag", ""))
                    else: p.bload(regs[16 * q + 4 * o:16 * q + 4 * o + 4], vDu[o], SRD_WO, sA, o * 1024, s.o.get("wflag", ""))
            return [(lambda q=q: grp(q)) for q in range(4)], 16
        if kind == "X":
            def grp(q):
                if q == 0:
                    p.s("s_add_u32", sXr, sRot, n % 8); p.s("s_and_b32", sXr, sXr, 7); p.s("s_lshl_b32", sXr, sXr, 7)
                else: p.s("s_add_u32", sXr, sXr, 32768)
                p.s("s_mov_b32", M0, xslot(n) + q * 4096)
                for o in range(4 if q < 4 else 2): p.dma(vDx[o], SRD_X, sXr, o * 1024, s.o.get("xflag", ""))
            return [(lambda q=q: grp(q)) for q in range(5)], 18
        def grp(q):
            if q == 0:
                p.s("s_add_u32", sWr, sRot, n // 2); p.s("s_and_b32", sWr, sWr, 7); p.s("s_lshl_b32", sWr, sWr, 19)
                p.s("s_add_u32", sWr, sWr, sWo[n & 1])
            else: p.s("s_add_u32", sWr, sWr, 131072)
            p.s("s_mov_b32", M0, wslot(n) + q * 4096)
            for o in range(4): p.dma(vDw[o], SRD_WQ, sWr, o * 1024, s.o.get("wflag", ""))
        return [(lambda q=q: grp(q)) for q in range(4)], 16
    def dma_tile(s, kind, n, regs=None):
        if kind in s.o.get("skipk", ""): return 0
        G, c = s.dma_groups(kind, n, regs)
        for g in G: g()
        return c
    def late_setup(s): pass
    def publish(s, n):
        p = s.p
        p.s("s_max_u32", sPm, sPm, n)
        p.v("v_mov_b32", vLf, sPm)
        p.ds_write("ds_write_b32", vLz, vLf, FLAGS - 131072)
    def loader(s):
        p = s.p
        p.s("s_mov_b32", sF, 0); p.s("s_mov_b32", sPm, 0)
        p.v("v_mov_b32", vLz, 131072)
        p.v("v_lshlrev_b32", vO, 4, vLane)
        lag = s.o.get("lag", 1)
        if s.o.get("fake") or s.o.get("indep"): s.publish(1000)
        vm = []
        where = {}; items = 0; pub = 0
        def landed(l):
            pend = [x[1] for x in vm[len(vm) - l:] if x[1] is not None] if l else []
            return min(pend) if pend else items
        for u, (op, kind, n, nf) in enumerate(s.T):
            if s.o.get("fake"): break
            if s.o.get("loadonly") and u >= s.o["loadonly"]: break
            if nf > 0 and not s.o.get("loadonly"):
                p.s("s_cmp_ge_u32", sF, nf)
                p.br("s_cbranch_scc1", f"L_free_{u}")
                p.s("s_mov_b32", sNeed, nf); p.s("s_mov_b32", sPub, items); p.s("s_mov_b32", sPb1, landed(1))
                p.gen(f"s_call_b64 {sRet}, L_poll", "salu", [sRet])
                p.label(f"L_free_{u}")
            if op == "dma":
                vm.append((s.dma_tile(kind, n), items)); items += 1
            elif op == "stage":
                where[(kind, n)] = len(vm)
                vm.append((s.dma_tile(kind, n, stage_regs(s.reg[(kind, n)])), None))
            else:
                p.wait(vm=min(63, sum(x[0] for x in vm[where[(kind, n)] + 1:])))
                regs = stage_regs(s.reg[(kind, n)])
                p.v("v_add_u32", V(31), {"K": kslot, "V": vslot, "U": uslot}[kind](n), vO)
                for b in range(16): p.ds_write("ds_write_b128", V(31), regs[4 * b:4 * b + 4], b * 1024)
                p.wait(lg=0)
                items += 1
            l = min(lag if u >= s.nP0 else s.o.get("lag0", 2), len(vm))
            if op != "write": p.wait(vm=sum(x[0] for x in vm[len(vm) - l:]))
            if landed(l) > pub:
                pub = landed(l); s.publish(pub)
            if u in (1, 4, 10, 20, 30, 40): s.stamp({1: 1, 4: 2, 10: 3, 20: 4, 30: 5, 40: 6}[u])
        done = list(range(items + 1))
        for l in range(lag - 1, -1, -1):
            p.wait(vm=16 * l)
            s.publish(done[len(done) - 1 - l])
        s.stamp(13)
        s.stamp_out()
        p.br("s_branch", "L_k1_end")
        p.label("L_poll")
        q = V(32, 4)
        p.ds_read("ds_read_b128", q, vLz, FLAGS - 131072 + 16); p.wait(lg=0)
        p.v("v_min3_u32", q[0], q[0], q[1], q[2]); p.v("v_readfirstlane_b32", sF, q[0])
        p.s("s_cmp_ge_u32", sF, sNeed); p.br("s_cbranch_scc1", "L_poll_ret")
        p.wait(vm=16)
        s.publish(sPb1)
        p.ds_read("ds_read_b128", q, vLz, FLAGS - 131072 + 16); p.wait(lg=0)
        p.v("v_min3_u32", q[0], q[0], q[1], q[2]); p.v("v_readfirstlane_b32", sF, q[0])
        p.s("s_cmp_ge_u32", sF, sNeed); p.br("s_cbranch_scc1", "L_poll_ret")
        p.wait(vm=0)
        s.publish(sPub)
        p.label("L_poll_spin")
        s.bound()
        p.ds_read("ds_read_b128", q, vLz, FLAGS - 131072 + 16); p.wait(lg=0)
        p.v("v_min3_u32", q[0], q[0], q[1], q[2]); p.v("v_readfirstlane_b32", sF, q[0])
        p.s("s_cmp_ge_u32", sF, sNeed); p.br("s_cbranch_scc0", "L_poll_spin")
        p.label("L_poll_ret")
        p.gen(f"s_setpc_b64 {sRet}", "branch", [], [sRet])
    srd = G1.K1.srd
    def build(s, name):
        p = s.p
        p.raw(f".globl {name}"); p.raw(".p2align 8"); p.raw(f".type {name},@function"); p.label(name)
        p.s("s_cmp_ge_u32", S(2), 256); p.br("s_cbranch_scc1", "L_k1_end")
        if s.o.get("stamps"): p.gen("s_memtime s[100:101]", "smem", [S(100, 2)])
        p.smem("s_load_dwordx16", S(64, 16), S(0, 2), 0)
        p.smem("s_load_dwordx8", S(80, 8), S(0, 2), 64)
        p.smem("s_load_dwordx2", S(88, 2), S(0, 2), 96)
        p.v("v_lshrrev_b32", V(1), 6, V(0))
        p.v("v_readfirstlane_b32", sWave, V(1))
        p.v("v_and_b32", vLane, 63, V(0))
        p.v("v_mov_b32", vZ, 131072)
        for i in range(4): p.v("v_mov_b32", V(252 + i), 0)
        p.ds_write("ds_write_b128", vZ, V(252, 4), FLAGS - 131072); p.ds_write("ds_write_b128", vZ, V(252, 4), FLAGS - 131072 + 16)
        p.s("s_mov_b32", sSpin, 0)
        sb = S(4); sh = S(5); sP = S(8)
        p.s("s_bfe_u32", sP, S(2), 0x10002)
        p.s("s_bfe_u32", sb, S(2), 0x10001); p.s("s_lshl_b32", sb, sb, 2); p.s("s_bfe_u32", S(9), S(2), 0x20003); p.s("s_add_u32", sb, sb, S(9))
        p.s("s_and_b32", sh, S(2), 1); p.s("s_lshl_b32", sh, sh, 3); p.s("s_lshr_b32", S(10), S(2), 5); p.s("s_add_u32", sh, sh, S(10))
        p.s("s_lshl_b32", sh, sh, 1)
        if s.o.get("norot"): p.s("s_mov_b32", sRot, 0)
        elif s.o.get("rot") == "b": p.s("s_lshl_b32", sRot, S(9), 1)
        elif s.o.get("rot") == "h": p.s("s_mov_b32", sRot, S(10))
        else:
            p.s("s_lshl_b32", sRot, S(9), 1); p.s("s_add_u32", sRot, sRot, S(10))
        if s.o.get("noswap"): p.s("s_mov_b32", S(11), 0)
        else: p.s("s_and_b32", S(11), S(9), 1)
        for tk in range(2):
            if tk: p.s("s_xor_b32", S(11), S(11), 1)
            p.s("s_lshl_b32", sKV[tk], S(11), 18); p.s("s_lshl_b32", sWo[tk], S(11), 8); p.s("s_lshl_b32", sOo[tk], S(11), 12)
        g = V(13); c16 = V(14); t1 = V(15); t2 = V(16); ph = V(17); t3 = V(18); x4 = V(19)
        p.v("v_lshrrev_b32", g, 4, vLane); p.v("v_and_b32", c16, 15, vLane)
        p.v("v_mov_b32", t3, 0x78)
        p.v("v_and_b32", x4, 3, vLane); p.v("v_bfe_u32", t2, vLane, 2, 2)
        p.v("v_lshlrev_b32", t1, 6, g)
        p.v("v_lshl_add_u32", ph, t2, 13, t1); p.v("v_lshl_add_u32", vDw[0], x4, 4, ph)
        p.v("v_xor_b32", vDw[2], 16, vDw[0])
        p.v("v_add_u32", vDw[3], 3 * (32768 - 1024), vDw[2]); p.v("v_add_u32", vDw[2], 2 * (32768 - 1024), vDw[2])
        p.v("v_add_u32", vDw[1], 32768 - 1024, vDw[0])
        p.v("v_lshl_add_u32", t1, t2, 8, t1)
        for k in range(4):
            p.v("v_xor_b32", ph, PHI[k], x4); p.v("v_lshl_add_u32", vDk[k], ph, 4, t1)
        for k in range(2):
            p.v("v_xor_b32", ph, 2 * k, x4); p.v("v_lshl_add_u32", vDv[k], ph, 4, t1)
        p.v("v_bfe_u32", t2, vLane, 2, 3); p.v("v_lshrrev_b32", t1, 5, vLane); p.v("v_lshlrev_b32", t1, 6, t1)
        p.v("v_lshl_add_u32", t2, t2, 10, t1)
        for k in range(2):
            p.v("v_bfe_u32", t1, vLane, 4, 1); p.v("v_add_u32", t1, 2 * k, t1); p.v("v_lshlrev_b32", t1, 1, t1)
            p.v("v_lshrrev_b32", t1, t1, t3); p.v("v_and_b32", t1, 3, t1)
            p.v("v_xor_b32", t1, t1, x4); p.v("v_lshl_add_u32", vDx[k], t1, 4, t2)
        p.v("v_add_u32", vDx[2], 2 * 7168, vDx[0]); p.v("v_add_u32", vDx[3], 3 * 7168, vDx[1]); p.v("v_add_u32", vDx[1], 7168, vDx[1])
        p.wait(lg=0)
        ptr = lambda i: S(64 + 2 * i, 2)
        so = S(6); so2 = S(7)
        p.s("s_cmp_eq_u32", sP, 1)
        for i in range(5): p.s("s_cselect_b64", ptr(i), ptr(5 + i), ptr(i))
        p.s("s_mul_i32", so, sb, 147456)
        s.srd(SRD_X, ptr(0), so, 147456)
        p.s("s_lshl_b32", so, sh, 8); p.s("s_sub_u32", so2, 4194304, so)
        s.srd(SRD_WQ, ptr(3), so, so2)
        p.s("s_lshl_b32", so, sb, 5); p.s("s_add_u32", so, so, sh); p.s("s_lshl_b32", so, so, 18)
        s.srd(SRD_K, ptr(1), so, 524288); s.srd(SRD_V, ptr(2), so, 524288)
        p.s("s_lshl_b32", so, sP, 3); p.s("s_add_u32", so, so, sb)
        p.s("s_mul_i32", so, so, 9); p.s("s_min_u32", so2, sWave, 2); p.s("s_mul_i32", so2, so2, 3); p.s("s_add_u32", so, so, so2)
        p.s("s_lshl_b32", so, so, 17); p.s("s_lshl_b32", so2, sh, 12); p.s("s_add_u32", so, so, so2)
        p.s("s_sub_u32", so2, 18874368, so)
        s.srd(SRD_WS, ptr(12), so, so2)
        def stamp_init():
            if s.o.get("stamps"):
                p.s("s_lshl_b32", so, S(2), 2); p.s("s_add_u32", so, so, sWave); p.s("s_lshl_b32", so, so, 6)
                p.s("s_add_u32", so, so, 64 << 20)
                s.srd(S(12, 4), ptr(12), so, 64)
                for i in range(16): p.s("s_mov_b64", S(64 + 2 * i, 2), 0)
            s.stamp(0)
        s.stamp_init = stamp_init; s.ptr = ptr

        p.s("s_lshl_b32", so, sP, 3); p.s("s_add_u32", S(96), so, sb)
        p.s("s_lshl_b32", S(97), sP, 10); p.s("s_mul_i32", so, sb, 144 * 2048); p.s("s_add_u32", S(97), S(97), so)
        p.s("s_lshr_b32", sPar, sOo[0], 12)
        p.s("s_lshr_b32", sKg, sh, 3); p.s("s_bfe_u32", sNc, sh, 0x20001); p.s("s_mov_b32", sPB, S(96))
        p.barrier()
        p.s("s_cmp_eq_u32", sWave, 3); p.br("s_cbranch_scc1", "L_loader")
        p.s("s_mov_b64", S(98, 2), ptr(11))
        p.s("s_or_b32", so, S(2), sWave); p.s("s_cmp_eq_u32", so, 0); p.br("s_cbranch_scc0", "L_nononce")
        p.gen("s_memrealtime s[6:7]", "smem", [S(6, 2)]); p.wait(lg=0)
        p.s("s_or_b32", sNon, S(6), 1)
        p.gen("s_mov_b64 exec, 1", "salu")
        p.v("v_mov_b32", V(130), sNon); p.v("v_mov_b32", V(132), 0)
        p.gen("global_store_dword v132, v130, s[98:99] sc1", "vmem", [], [V(130), V(132), S(98, 2)])
        p.gen("s_mov_b64 exec, -1", "salu")
        p.label("L_nononce")
        p.s("s_mul_i32", so, sPB, 9); p.s("s_mul_i32", so2, sWave, 3); p.s("s_add_u32", so, so, so2); p.s("s_lshl_b32", so, so, 17)
        s.srd(SRD_OR, ptr(12), so, 3 * 131072)
        p.s("s_lshl_b32", so, sPB, 2); p.s("s_add_u32", so, so, sNc); p.s("s_mul_i32", sPl, so, 384)
        p.s("s_lshl_b32", so2, sKg, 2); p.s("s_add_u32", sFl, sPl, so2)
        p.s("s_mul_i32", so, so, 4 * 55296); p.s("s_add_u32", so, so, PARTOFF)
        s.srd(SRD_PT, ptr(12), so, 4 * 55296)
        p.s("s_lshl_b32", so, sPB, 2); p.s("s_add_u32", so, so, sKg); p.s("s_mul_i32", sPo, so, 384)
        p.s("s_lshl_b32", so2, sNc, 2); p.s("s_add_u32", sFo, sPo, so2)
        p.s("s_mul_i32", so, sWave, 48 * 2048); p.s("s_add_u32", so, so, S(97)); p.s("s_lshl_b32", so2, sNc, 8); p.s("s_add_u32", so, so, so2)
        p.s("s_lshl_b32", so2, sKg, 6); p.s("s_add_u32", so, so, so2); p.s("s_sub_u32", so2, 2359296, so)
        s.srd(SRD_OUT, ptr(10), so, so2)
        s.srd(SRD_DBG, ptr(12), FLAGOFF, 64 * 384)
        for i in range(4):
            p.s("s_add_u32", so, sNc, i); p.s("s_and_b32", so, so, 3); p.s("s_lshl_b32", so2, sKg, 2); p.s("s_add_u32", so, so, so2); p.s("s_lshl_b32", so, so, 13)
            p.s("s_add_u32", sOH[0][i], so, sOo[0]); p.s("s_add_u32", sOH[1][i], so, sOo[1])
        stamp_init()
        if not s.o.get("nowarm"):
            p.gen("s_getpc_b64 s[90:91]", "salu", [S(90, 2)])
            p.label("L_pc")
            p.gen(f"s_sub_u32 s90, s90, L_pc-{name}", "salu", [S(90)], [S(90)]); p.s("s_subb_u32", S(91), S(91), 0)
            p.s("s_lshr_b32", S(6), S(2), 3); p.s("s_mul_i32", S(6), S(6), 3); p.s("s_add_u32", S(6), S(6), sWave); p.s("s_lshl_b32", S(6), S(6), 10)
            p.v("v_lshlrev_b32", V(140), 4, vLane); p.v("v_add_u32", V(140), S(6), V(140))
            p.gen(f"v_min_u32 v140, L_k1_end-{name}-16, v140", "valu", [V(140)], [V(140)])
            p.gen("global_load_dwordx4 v[136:139], v140, s[90:91]", "vmem", [V(136, 4)], [V(140), S(90, 2)])
        if s.o.get("loadonly") and not s.o.get("indep"): p.br("s_branch", "L_k1_end")
        p.v("v_and_b32", t1, 1, g); p.v("v_xor_b32", t1, t1, c16); p.v("v_lshlrev_b32", t1, 4, t1)
        p.v("v_and_b32", t2, 1, c16); p.v("v_lshl_add_u32", t1, t2, 3, t1); p.v("v_lshl_add_u32", vTbase, g, 11, t1)
        p.v("v_and_b32", t1, 1, g); p.v("v_cmp_eq_u32", sOdd, 1, t1)
        p.v("v_lshrrev_b32", t1, 2, c16); p.v("v_lshlrev_b32", t2, 1, t1); p.v("v_lshrrev_b32", ph, t2, t3); p.v("v_and_b32", ph, 3, ph)
        p.v("v_xor_b32", ph, g, ph)
        p.v("v_lshlrev_b32", t1, 11, t1); p.v("v_and_b32", t2, 3, c16); p.v("v_lshl_add_u32", t1, t2, 6, t1)
        p.v("v_lshl_add_u32", vKbase, ph, 4, t1)
        p.v("v_lshrrev_b32", t1, 3, c16); p.v("v_lshlrev_b32", t1, 10, t1); p.v("v_and_b32", t2, 7, c16); p.v("v_lshl_add_u32", t1, t2, 6, t1)
        p.v("v_lshl_add_u32", vXbase, ph, 4, t1)
        p.s("s_mul_i32", S(6), sWave, 6144); p.v("v_add_u32", vXbase, S(6), vXbase)
        p.v("v_lshlrev_b32", t1, 11, g); p.v("v_lshrrev_b32", t2, 2, c16); p.v("v_lshl_add_u32", t1, t2, 6, t1)
        p.v("v_and_b32", t2, 1, g); p.v("v_lshl_add_u32", t1, t2, 5, t1); p.v("v_and_b32", t2, 3, c16); p.v("v_lshl_add_u32", vVbase, t2, 3, t1)
        p.v("v_lshlrev_b32", vO, 4, vLane)
        p.s("s_lshl_b32", S(6), sWave, 2); p.s("s_add_u32", S(6), S(6), FLAGS + 16); p.v("v_mov_b32", vFa, S(6)); p.v("v_mov_b32", vEp, 1)
        p.s("s_mov_b32", sK, kslot(0)); p.s("s_mov_b32", sV, vslot(0))
        p.v("v_add_u32", vK, sK, vKbase); p.v("v_add_u32", vV, sV, vVbase); p.v("v_xor_b32", vV1, 32, vV)
        p.v("v_add_u32", vW, wslot(0), vTbase); p.v("v_xor_b32", vW1, 8, vW); p.v("v_add_u32", vXa, xslot(0), vXbase)
        p.s("s_mov_b32", sThr, f2u(float("inf") if s.o.get("nothr") else THR)); p.s("s_mov_b32", sC[0], f2u(CSCALE)); p.s("s_mov_b32", sC[1], f2u(CSCALE))
        p.v("v_mov_b32", V(13), 0x3F803F80)
        for i in range(4): p.v("v_accvgpr_write_b32", ONES[i], V(13))
        for f in s.zero_fillers(): f()
        s.stamp(1)
        p.s("s_mov_b32", sNeed, s.req([("W", 0), ("X", 0)]))
        s.flag_read(); p.wait(lg=0); s.check("init")
        s.stamp(2)
        s.prime(s.treads('WX', 0, 0), s.treads('WX', 0, 1)); s.ncarry = 8
        for n in range(16):
            p.cmt(f"---- P0 tile {n}")
            if n < 15:
                a = 'W' if n % 2 == 0 else 'WX'
                nr = [s.treads(a, 0, 0), s.treads(a, 0, 1)]
                need = s.req([("W", n + 1), ("X", (n + 1) // 2)])
            else:
                nr = s.k2(); need = s.req([("K", 0)])
            s.qp_tile(n, nr, need, s.qconv1_fillers() if n == 15 else ())
        p.wait(vm=0)
        s.stamp(3)
        s.task(0)
        p.s("s_mov_b32", sNeed, s.req([("K", 16)]))
        s.flag_read(); p.wait(lg=0); s.check("bnd")
        s.prime(*s.k2()); s.ncarry = 4
        s.task(1)
        s.tail()
        s.stamp(13); s.stamp(14, True)
        s.stamp_out()
        p.br("s_branch", "L_k1_end")
        p.label("L_qconv2")
        s.qconv2()
        p.br("s_branch", "L_qconv2_back")
        p.label("L_str1")
        s.store_r1(); s.nonce_load()
        p.br("s_branch", "L_str1_back")
        p.label("L_getnonce")
        s.bound(); s.nonce_load()
        p.label("L_dosig0")
        p.wait(vm=0)
        p.v("v_readfirstlane_b32", sNon, vPl4[2])
        p.s("s_cmp_eq_u32", sNon, 0); p.br("s_cbranch_scc1", "L_getnonce")
        s.signal(0, sFo)
        p.br("s_branch", "L_str1_back")
        for tag in s.spins:
            p.label(f"L_spin_{tag}")
            s.bound()
            s.flag_read(); p.wait(lg=0)
            p.v("v_readfirstlane_b32", sF, vFl)
            p.s("s_cmp_ge_u32", sF, sNeed)
            p.br("s_cbranch_scc0", f"L_spin_{tag}")
            p.br("s_branch", f"L_spun_{tag}")
        for tag, nx in s.stubs:
            p.label(f"L_stub_{tag}")
            p.gen(f"s_call_b64 {sRet}, L_rare{nx}", "salu", [sRet])
            p.br("s_branch", f"L_back_{tag}")
        for nx in range(2):
            p.label(f"L_rare{nx}")
            p.nop(10)
            s.rescale(nx, False)
            p.nop(4)
            p.gen(f"s_setpc_b64 {sRet}", "branch", [], [sRet])
        for tag, field, word in s.gspins:
            p.label(f"L_gspin_{tag}")
            s.bound()
            p.gen("s_sleep 1", "salu")
            s.poll_issue(field, word); p.wait(vm=0)
            s.poll_test()
            p.br("s_cbranch_scc0", f"L_gspin_{tag}")
            p.br("s_branch", f"L_gspun_{tag}")
        p.label("L_loader")
        p.s("s_lshl_b32", so, sNc, 8); p.s("s_sub_u32", so2, 4194304, so)
        s.srd(SRD_WO, ptr(4), so, so2)
        p.v("v_bfe_u32", t2, vLane, 2, 2); p.v("v_add_u32", t1, sKg, g); p.v("v_and_b32", t1, 3, t1); p.v("v_lshlrev_b32", t1, 6, t1)
        p.v("v_lshl_add_u32", t1, t2, 10, t1); p.v("v_lshl_add_u32", vDu[0], x4, 4, t1)
        p.v("v_xor_b32", vDu[2], 16, vDu[0])
        p.v("v_add_u32", vDu[1], 15 * 1024, vDu[0]); p.v("v_add_u32", vDu[3], 17 * 1024, vDu[2]); p.v("v_add_u32", vDu[2], 2 * 1024, vDu[2])
        if s.o.get("lind"):
            for r in vDk + vDv: p.v("v_lshlrev_b32", r, 4, vLane)
            p.v("v_and_b32", t1, 15, vLane); p.v("v_lshlrev_b32", t1, 4, t1); p.v("v_lshl_add_u32", vDw[0], g, 13, t1)
            for o in range(1, 4): p.v("v_add_u32", vDw[o], o * (32768 - 1024), vDw[0])
            p.v("v_and_b32", t1, 7, vLane); p.v("v_lshlrev_b32", t1, 4, t1); p.v("v_lshrrev_b32", t2, 3, vLane); p.v("v_lshl_add_u32", vDx[0], t2, 10, t1)
            for o in range(1, 4): p.v("v_add_u32", vDx[o], o * 7168, vDx[0])
        stamp_init()
        s.loader()
        p.label("L_k1_end")
        p.gen("s_endpgm", "branch")
        return p
vZ = V(251)

def one(fn, **o):
    k = K1(o); p = k.build(NAME + "_kernel")
    print(fn, "instrs", p.count(), "auto nops", p.nops, "over", k.over, file=sys.stderr)
    open(fn, "w").write(G1.assemble(["; @launch grid=(256,1,1) block=(256,1,1) lds=163840"], [p], [kdesc(NAME + "_kernel")]))
def full(fn, o1=None, o2=None):
    k = K1(o1); p1 = k.build("attn_kernel"); p2 = G1.build_k2("oproj_kernel", o2)
    t = G1.assemble(["; @launch kernel=attn_kernel grid=(256,1,1) block=(256,1,1) lds=163840",
                  "; @launch kernel=oproj_kernel grid=(256,1,1) block=(256,1,1) lds=147456"], [p1, p2],
                 [kdesc("attn_kernel"), kdesc("oproj_kernel", vgpr=256, accum=256)])
    open(fn, "w").write(t)
if __name__ == "__main__":
    R = dict(rot="h")
    one("v7.s", **R)
    one("v7rt.s", stamps=True, rt=True, **R)
    one("v7rtf.s", stamps=True, rt=True, fine=True, **R)
```

```python
import sys, math, struct
from asmlib import *
import gen as G1
NAME = G1.NAME
f2u = G1.f2u
TILE = 16384; XT = 18432
NKS, NVS = 5, 4
KRING, VRING = 0, 5 * TILE
X0RING = 7 * TILE
FLAGS = 148 * 1024
PHI = [0, 2, 3, 1]
def kslot(n): return KRING + (n % NKS) * TILE
def vslot(n): return VRING + (n % NVS) * TILE
def wslot(n): return [2, 6, 3, 4][n % 4] * TILE
def xslot(e): return X0RING + (e % 2) * XT
TO = [0, 1, 8, 9, 2, 3, 4, 5, 6, 7, 10, 11, 12, 13, 14, 15]
USL = [("K", 27), ("K", 28), ("K", 29), ("V", 28), ("K", 30), ("V", 29), ("K", 31), ("V", 30), ("V", 31)]
def uslot(n):
    k, m = USL[TO.index(n) % 9]
    return kslot(m) if k == "K" else vslot(m)
vLane = V(0); vKbase = V(1); vTbase = V(2); vK = V(3); vV = V(4); vW = V(5)
vW1 = V(11); vV1 = V(6); vXa = V(7); vVbase = V(8); vO = V(9); vMx = V(10); vXbase = V(129)
vFl = V(248); vLf = V(30); vLz = V(40); vFa = V(249); vEp = V(250)
vDx = [V(20 + i) for i in range(4)]; vDk = [V(24 + i) for i in range(4)]; vDv = [V(28), V(29)]; vDw = [V(36 + i) for i in range(4)]
def stage_regs(i): return V(64 + 64 * i, 64) if i < 3 else A(64 * (i - 3), 64)
TMP = [V(12 + i) for i in range(8)]
TQ = [V(12, 4), V(16, 4), V(252, 4)]
def negm(t): return V(20 + 4 * t, 4)
SB = [32, 80]
def Sq(b, al, t): return V(SB[b] + (al * 3 + t) * 4, 4)
def Pq(ks, t): return V(128 + (ks * 3 + t) * 4, 4)
def Oq(u, t): return V(152 + (u * 3 + t) * 4, 4)
def QP1(u, t): return V(32 + (u * 3 + t) * 4, 4)
def QP2(u, t): return A((u * 3 + t) * 4, 4)
QBASE = [96]
def Qf(t, s): return A(QBASE[0] + (t * 4 + s) * 4, 4)
def Qf2(t, s): return A((s * 3 + t) * 4, 4)
QSEL = [0]
def Qcur(t, s): return (Qf, Qf2)[QSEL[0]](t, s)
def Abuf(par): return A(144 + 16 * (par & 3), 16)
def Xf(ks, t): return A(208 + (ks * 3 + t) * 4, 4)
def Lq(t): return A(232 + 4 * t, 4)
ONES = A(244, 4)
sWave = S(3)
SRD_X = S(16, 4); SRD_K = S(24, 4); SRD_V = S(28, 4); SRD_WQ = S(40, 4); SRD_WS = S(48, 4)
sK = S(52); sV = S(53); sNeed = S(54); sCnt = S(55); sF = S(56); sThr = S(57)
sC = S(58, 2); sRet = S(60, 2); sT0 = S(62); sT1 = S(63); sRot = S(20); sWr = S(21); sXr = S(22); sPub = S(23); sSpin = S(32); sKV = [S(33), S(34)]; sWo = [S(35), S(36)]; sOo = [S(37), S(38)]; sOdd = S(46, 2)
SRD_OR = S(16, 4); SRD_PT = S(24, 4); SRD_OUT = S(28, 4); SRD_DBG = S(40, 4); SRD_WO = S(48, 4)
sOH = [[S(20), S(21), S(22), S(23)], [S(33), S(34), S(35), S(36)]]
sKg = S(4); sNc = S(5); sPar = S(8); sPB = S(9); sPo = S(10); sPl = S(11)
vDu = [V(44 + i) for i in range(4)]
vOr = [V(9), V(7), V(19)]; vPl4 = V(252, 4); vPoll = V(252); vOne = V(253); vOut = V(134)
FLAGOFF = 2 * 18874368; sNon = S(39); sFo = S(44); sFl = S(45); sPb1 = S(45); sPm = S(44); sOc = S(96); sTm = S(97)
OFB = {8: 32, 9: 56, 2: 80, 3: 104, 4: 128, 5: 152, 6: 176, 7: 200, 10: 224, 11: 32, 12: 56, 13: 80, 14: 104, 15: 128}
def Of(n, ks, t):
    if n < 2: return A(48 + (n * 6 + ks * 3 + t) * 4, 4)
    return V(OFB[n] + (ks * 3 + t) * 4, 4)
def OPa(u, t):
    i = u * 3 + t
    return A(4 * i, 4) if i < 12 else A(96 + 4 * (i - 12), 4)
PARTOFF = 18874368
CSCALE = G1.CSCALE; THR = 16.0

PLANS = {}
class K1:
    def __init__(s, opts=None):
        s.p = Prog(); s.par = 0; s.over = []; s.vmlog = []; s.gspins = []; s.hookcost = {}; s.stubs = []; s.spins = []; s.o = opts or {}
        s.NT = s.o.get("kvflag", " nt")
        if s.o.get("nomfma"): s.p.mfma = lambda *a, **k: None
        if s.o.get("nods"): s.p.ds_read = lambda *a, **k: None
        if s.o.get("lin"):
            od = s.p.ds_read
            s.p.ds_read = lambda op, d, addr, off: od(op, d, vO if op != "ds_read_b32" else addr, off)
        if s.o.get("noexp"):
            ov = s.p.v
            def vv(op, *a, **k):
                if op in ("v_exp_f32", "v_cvt_pk_bf16_f32", "v_max3_f32"): return
                ov(op, *a, **k)
            s.p.v = vv
        s.stream()
    def stream(s):
        rel = {}; ep = 0
        for n in range(16):
            ep += 1; rel[("W", n)] = ep
            if n % 2 == 0: rel[("X", n // 2)] = ep
        for J in range(32):
            ep += 1; rel[("V", J)] = ep
            if J % 16 < 15: rel[("K", J + 1)] = ep
            if J % 16 == 0: rel[("K", J)] = ep
        for n in TO:
            ep += 1; rel[("U", n)] = ep
        def need(k, n):
            if k == "U":
                j = TO.index(n)
                return rel[("U", TO[j - 9])] if j >= 9 else rel[USL[j]]
            if k == "W": return rel[("W", n - 4)] if n >= 4 else 0
            if k == "X": return rel[("X", n - 2)] if n >= 2 else 0
            if k == "K": return [0, 0, rel[("W", 12)], rel[("W", 14)], rel[("W", 15)]][n] if n < 5 else rel[("K", n - 5)]
            return [0, rel[("W", 13)], rel[("X", 6)], rel[("X", 7)]][n] if n < 4 else rel[("V", n - 4)]
        staged = s.o.get("staged", [])
        spos = s.o.get("spos", [3, 5, 7, 8, 9, 10, 11])
        T = []
        for n in range(16):
            if n % 2 == 0: T.append(("dma", "X", n // 2))
            T.append(("dma", "W", n))
            kv0 = s.o.get("kvpos", {5: ("K", 0), 8: ("K", 1), 11: ("V", 0)})
            if n in kv0: T.append(("dma",) + kv0[n])
        s.nP0 = len(T)
        names = [("K", 2), ("V", 1), ("V", 2), ("K", 3), ("V", 3), ("K", 4), ("V", 4)]
        for n in range(5, 32): names += [("K", n), ("V", n)]
        skip = s.o.get("skip", 4); nw = 0
        reg = {t: i for i, t in enumerate(staged)}
        nxt = (max(names.index(t) for t in staged) + 1) if staged else len(names)
        for t in names:
            if t in reg:
                T.append(("write",) + t); nw += 1
                if nw % skip != 0 and nxt < len(names):
                    reg[names[nxt]] = reg[t]; T.append(("stage",) + names[nxt]); nxt += 1
            else: T.append(("dma",) + t)
        nus = s.o.get("nus", 0)
        ust = TO[s.o.get("us0", 0):][:nus]
        at = T.index(("dma",) + s.o.get("usat", ("K", 21)))
        T[at:at] = [("stage", "U", n) for n in ust]
        for i, n in enumerate(ust): reg[("U", n)] = i
        T += [("write" if n in ust else "dma", "U", n) for n in TO]
        s.reg = reg; s.pairs = set()
        s.T = [(op, k, n, 0 if op == "stage" else need(k, n)) for op, k, n in T]
        s.pos = {}
        for op, k, n, _ in s.T:
            if op != "stage": s.pos[(k, n)] = len(s.pos)
        s.P = s.pos[("K", 5)] - 6
        for J in list(range(14)) + list(range(16, 30)):
            assert s.req([("K", J + 2), ("V", J + 1)]) <= s.P + 2 * J + 1, J
    def req(s, tiles): return 1 + max(s.pos[t] for t in tiles)
    def stamp(s, i, fine=False):
        if s.o.get("iter"):
            if i in (6, 11): s.p.gen(f"s_memtime {S(64 + 14 + (16 if i == 11 else 0), 2)}", "smem")
            return
        if s.o.get("stamps") and bool(s.o.get("fine")) == fine: s.p.gen(f"s_memtime {S(64 + 2 * i, 2)}", "smem", [S(64 + 2 * i, 2)])
    def stamp_out(s):
        if not s.o.get("stamps"): return
        p = s.p
        p.wait(lg=0)
        if s.o.get("entry"):
            p.s("s_sub_u32", S(100), S(64), S(100)); p.s("s_add_u32", S(64 + 30), S(100), S(64))
        elif not s.o.get("iter"): p.s("s_add_u32", S(64 + 30), sSpin, S(64))
        p.v("v_mov_b32", V(1), 0)
        for i in range(16):
            p.v("v_mov_b32", V(2), S(64 + 2 * i))
            p.bstore(V(2), V(1), S(12, 4), 0, 4 * i, op="buffer_store_dword")
    def flag_read(s): s.p.ds_read("ds_read_b32", vFl, vFa, 0) if False else s.p.ds_read("ds_read_b32", vFl, vZ, FLAGS - 131072)
    def release(s):
        p = s.p
        p.ds_write("ds_write_b32", vFa, vEp, 0)
        p.v("v_add_u32", vEp, 1, vEp)
    def check(s, tag):
        p = s.p
        if s.o.get("nochk"): return
        p.v("v_readfirstlane_b32", sF, vFl)
        p.s("s_cmp_ge_u32", sF, sNeed)
        p.br("s_cbranch_scc0", f"L_spin_{tag}")
        p.label(f"L_spun_{tag}")
        s.spins.append(tag)
    def bound(s):
        p = s.p
        p.s("s_add_u32", sSpin, sSpin, 1); p.s("s_cmp_gt_u32", sSpin, 1 << 22); p.br("s_cbranch_scc1", "L_k1_end")
    def kreads(s, al):
        ks, a = al >> 1, al & 1
        return [lambda buf, sx=sx: s.p.ds_read("ds_read_b128", buf[4 * sx:4 * sx + 4], vK, (8 * ks + a) * 1024 + 256 * sx) for sx in range(4)]
    def treads(s, addr, ks, half):
        out = []
        for uu in range(4):
            u = 4 * half + uu; sp, ap = u >> 1, u & 1
            for a in range(2):
                if addr == 'V':
                    out.append(lambda buf, uu=uu, a=a, sp=sp, ap=ap: s.p.ds_read("ds_read_b64_tr_b16", buf[4 * uu + 2 * a:4 * uu + 2 * a + 2],
                                                                         (vV, vV1)[ap], (8 * ks + a) * 1024 + 256 * sp))
                else:
                    out.append(lambda buf, uu=uu, a=a, sp=sp, ap=ap: s.p.ds_read("ds_read_b64_tr_b16", buf[4 * uu + 2 * a:4 * uu + 2 * a + 2],
                                                                         (vW, vW1)[ap], (8 * ks + a) * 1024 + 256 * sp))
        if addr == 'WX' and half == 0:
            for t in range(3):
                out.append(lambda buf, t=t: s.p.ds_read("ds_read_b128", Xf(ks, t), vXa, t * 2048 + ks * 512))
        return out
    def kbatch(s, al, sb, czero=False):
        mf = []
        for sx in range(4):
            for t in range(3):
                D = Sq(sb, al, t)
                C = (0 if czero else negm(t)) if sx == 0 else D
                mf.append(lambda buf, D=D, C=C, sx=sx, t=t: s.p.mfma(D, buf[4 * sx:4 * sx + 4], Qcur(t, sx), C))
        return dict(reads=s.kreads(al), mf=mf)
    def tbatch(s, addr, ks, half, acc, bop, withl=False, czero=False):
        mf = []
        for t in range(3):
            for uu in range(4):
                D = acc(4 * half + uu, t)
                mf.append(lambda buf, D=D, uu=uu, t=t: s.p.mfma(D, buf[4 * uu:4 * uu + 4], bop(ks, t), 0 if czero else D))
            if withl: mf.append(lambda buf, t=t: s.p.mfma(Lq(t), ONES, bop(ks, t), Lq(t)))
        return dict(reads=s.treads(addr, ks, half), mf=mf)
    def prime(s, r0, r1):
        for f in r0: f(Abuf(0))
        for f in r1: f(Abuf(1))
    def plan(s, nslot, items, waits):
        at = {}
        pre = [[] for _ in range(nslot + 1)]; post = [[] for _ in range(nslot)]
        ds = [it for it in items if it["ds"]]; nd = [it for it in items if not it["ds"]]
        fill = [0] * (nslot + 1)
        dsi = 0
        def ready(it, slot):
            if it["id"] in at or it["est"] > slot: return False
            for d in it["deps"]:
                if at.get(d["id"], 10 ** 9) >= slot: return False
            pv = it.get("prev")
            return pv is None or pv["id"] in at
        for slot in range(nslot):
            for it in nd:
                if it["id"] not in at and it.get("hard") is not None and it["hard"] <= slot:
                    chain = [it]
                    while chain[-1].get("prev") is not None and chain[-1]["prev"]["id"] not in at: chain.append(chain[-1]["prev"])
                    for c in reversed(chain):
                        for d in c["deps"]:
                            if d["id"] not in at:
                                if d["ds"]: return None
                                at[d["id"]] = slot - 1; pre[slot].append(d); fill[slot] += d["cost"]
                        at[c["id"]] = slot - 1; pre[slot].append(c); fill[slot] += c["cost"]
            if slot in waits:
                if any(it["grp"] == waits[slot] and it["id"] not in at for it in ds): return None
                lead = min([slot - at[it["id"]] for it in ds if it["grp"] == waits[slot]] or [99])
                fill[slot] += max(0, (s.o.get("lead", 7) - lead)) * 16
            fixedc = (4 if (slot + 1) in waits else 0) + 4 * s.hookcost.get(slot + 1, 0)
            budget = 8 - fixedc; fill[slot + 1] += fixedc
            if dsi < len(ds) and ds[dsi]["slot"] <= slot and ds[dsi]["est"] <= slot:
                it = ds[dsi]; dsi += 1; at[it["id"]] = slot; post[slot].append(it); budget -= 4; fill[slot + 1] += 4
            while budget > 0:
                c = [it for it in nd if it["cost"] <= budget and ready(it, slot)]
                if not c: break
                it = min(c, key=lambda x: (x["dl"], x["id"]))
                if it["cost"] == 4 and budget == 8 and len([x for x in c if x["cost"] == 4]) < 2 and any(x["cost"] == 8 for x in c):
                    it = min([x for x in c if x["cost"] == 8], key=lambda x: (x["dl"], x["id"]))
                at[it["id"]] = slot; post[slot].append(it); budget -= it["cost"]; fill[slot + 1] += it["cost"]
        for it in items:
            if it["id"] not in at:
                pre[nslot].append(it); fill[nslot] += it["cost"] + (8 if it["ds"] else 0)
        for g, extra in (("N0", 0), ("N1", 4)):
            l = [nslot + extra - at.get(it["id"], nslot) for it in ds if it["grp"] == g]
            if l: fill[nslot] += max(0, s.o.get("lead", 7) - min(l)) * 16
        cost = sum(max(16, 8 + f) for f in fill[1:]) + fill[0]
        return cost, pre, post
    def sched(s, mf, items, waits, hooks=None, carry=None, opt=None):
        p = s.p; hooks = hooks or {}; carry = carry or {}
        last = {}
        for i, it in enumerate(items):
            it.setdefault("deps", []); it.setdefault("ds", False); it.setdefault("grp", None); it["id"] = i
            if it.get("seq"):
                it["prev"] = last.get(it["seq"]); last[it["seq"]] = it
        ds = [it for it in items if it["ds"]]
        best = s.plan(len(mf), items, waits)
        if opt:
            key = (opt, len(ds))
            if key in PLANS:
                for it, sl in zip(ds, PLANS[key]): it["slot"] = sl
                best = s.plan(len(mf), items, waits)
            else:
                import random
                rnd = random.Random(1)
                for itn in range(s.o.get("optit", 1500)):
                    it = rnd.choice(ds); old = it["slot"]
                    it["slot"] = max(it["est"], min(len(mf) - 1, old + rnd.choice([-3, -2, -1, 1, 2, 3])))
                    r = s.plan(len(mf), items, waits)
                    if r is not None and r[0] <= best[0]: best = r
                    else: it["slot"] = old
                PLANS[key] = [it["slot"] for it in ds]
        cost, pre, post = best
        dslog = []
        def emit(it):
            it["fn"]()
            if it["ds"]: dslog.append(it["grp"])
        for slot, m in enumerate(mf):
            for it in pre[slot]: emit(it)
            if slot in waits:
                g = waits[slot]
                if g in dslog: n = len(dslog) - 1 - max(i for i, x in enumerate(dslog) if x == g)
                else: n = carry[g] + len(dslog)
                if not s.o.get("nowait"): p.wait(lg=min(n, 15))
            for h in hooks.get(slot, ()):
                if h() == "ds": dslog.append(None)
            m()
            for it in post[slot]: emit(it)
        for it in pre[len(mf)]: emit(it)
        s.over.append(cost)
    def rd_items(s, reads, buf, grp, est, dl, e0=None):
        n = len(reads)
        return [dict(fn=(lambda f=f: f(buf)), cost=4, ds=True, est=(est if e0 is None else e0), slot=est + ((dl - est + 1) * i) // n, dl=0, grp=grp) for i, f in enumerate(reads)]
    def misc_items(s, ops, est, dl, seq):
        n = len(ops)
        return [dict(fn=f, cost=4, est=est, dl=est + (dl - est) * (i + 1) / n, hard=dl + 1, seq=seq) for i, f in enumerate(ops)]
    def ring_adv(s, sreg, n, base, vdst, vbase):
        p = s.p
        return [lambda: p.s("s_add_u32", sreg, sreg, TILE),
                lambda: (p.s("s_cmp_eq_u32", sreg, base + n * TILE), p.s("s_cselect_b32", sreg, base, sreg)),
                lambda: p.v("v_add_u32", vdst, sreg, vbase)]
    def kmf(s, sb, czero=False):
        mf = []
        for al in range(4):
            for sx in range(4):
                for t in range(3):
                    D = Sq(sb, al, t)
                    C = (0 if czero else negm(t)) if sx == 0 else D
                    mf.append(lambda al=al, D=D, C=C, sx=sx, t=t: s.p.mfma(D, Abuf(al)[4 * sx:4 * sx + 4], Qcur(t, sx), C))
        return mf
    def rel_hook(s):
        s.release(); return "ds"
    def step(s, cur, nxt, tag, qk=True, need=None, inc=2):
        p = s.p; nx = cur ^ 1
        o = 48 if qk else 0
        mf = s.kmf(nx) if qk else []
        for ks in range(2):
            for t in range(3):
                for u in range(8):
                    mf.append(lambda ks=ks, t=t, u=u: p.mfma(Oq(u, t), Abuf(2 * ks + (u >> 2))[4 * (u & 3):4 * (u & 3) + 4], Pq(ks, t), Oq(u, t)))
                mf.append(lambda ks=ks, t=t: p.mfma(Lq(t), ONES, Pq(ks, t), Lq(t)))
        I = []
        if qk:
            I += s.rd_items(s.kreads(2), Abuf(2), "A2", 1, 8, 0) + s.rd_items(s.kreads(3), Abuf(3), "A3", 9, 16, 0)
            I += s.rd_items(s.treads('V', 0, 0), Abuf(0), "V0", 17, 30, 12) + s.rd_items(s.treads('V', 0, 1), Abuf(1), "V1", 31, 43, 24)
            I += s.rd_items(s.treads('V', 1, 0), Abuf(2), "V2", 44, 55, 36) + s.rd_items(s.treads('V', 1, 1), Abuf(3), "V3", 56, 67, 48)
            I.append(dict(fn=s.flag_read, cost=4, ds=True, est=60, slot=68, dl=0, grp="FL"))
        else:
            I += s.rd_items(s.treads('V', 1, 0), Abuf(2), "V2", 0, 9) + s.rd_items(s.treads('V', 1, 1), Abuf(3), "V3", 10, 19)
        I += s.rd_items(nxt[0], Abuf(0), "N0", o + 38 - len(nxt[0]) // 2, o + 46, o + 27) + s.rd_items(nxt[1], Abuf(1), "N1", o + 47 - len(nxt[0]) // 2, o + 53, o + 27)
        span = s.o.get('span', 88) if qk else 40
        k = 0
        for ks in range(2):
            for t in range(3):
                hd = o + 27 * ks + 9 * t
                for a in range(2):
                    q = Sq(cur, 2 * ks + a, t); P = Pq(ks, t); E = []
                    for r in range(4):
                        k += 1
                        E.append(dict(fn=(lambda q=q, r=r: p.v("v_exp_f32", q[r], q[r])), cost=8, est=0, dl=min(hd - 3, span * k / 48.0), hard=hd))
                    I += E
                    for h in range(2):
                        I.append(dict(fn=(lambda q=q, P=P, a=a, h=h: p.v("v_cvt_pk_bf16_f32", P[2 * a + h], q[2 * h], q[2 * h + 1])), cost=4, est=0,
                                      dl=min(hd - 2, span * k / 48.0 + 1), hard=hd, deps=E[2 * h:2 * h + 2]))
        if qk:
            regs = [(al, Sq(nx, al, t)[r]) for al in range(4) for t in range(3) for r in range(4)]
            ops = [(0, lambda: p.v("v_max3_f32", vMx, regs[0][1], regs[1][1], regs[2][1]))]
            for i in range(3, 47, 2): ops.append((regs[i + 1][0], lambda i=i: p.v("v_max3_f32", vMx, vMx, regs[i][1], regs[i + 1][1])))
            ops.append((3, lambda: p.v("v_max_f32", vMx, vMx, regs[47][1])))
            for i, (al, f) in enumerate(ops): I.append(dict(fn=f, cost=4, est=12 * al + 16, dl=30 + 70 * (i + 1) / 24.0, seq="mx"))
            I += s.misc_items(s.ring_adv(sK, NKS, KRING, vK, vKbase), 24, 70, "rk")
            I += s.misc_items([(lambda: p.s("s_add_u32", sNeed, sNeed, inc)) if need is None else (lambda: p.s("s_mov_b32", sNeed, need))], 0, 70, "nd")
        vlast = [it for it in I if it.get("grp") == "V3"][-1]
        ra = s.misc_items(s.ring_adv(sV, NVS, VRING, vV, vVbase) + [lambda: p.v("v_xor_b32", vV1, 32, vV)], o + 0, o + 26, "rv")
        ra[2]["deps"] = [vlast]
        I += ra
        if qk: waits = {0: "C0", 12: "C1", 24: "A2", 36: "A3", 48: "V0", 52: "V1", 75: "FL"}
        else: waits = {0: "C0", 4: "C1", 27: "V2", 31: "V3"}
        if qk:
            hooks = {75: [s.rel_hook, lambda: s.check(tag)]}; s.hookcost = {75: 5}
        else:
            hooks = {31: [s.rel_hook]}; s.hookcost = {31: 2}
        s.sched(mf, I, waits, hooks, carry={"C0": s.ncarry, "C1": 0}, opt=("step", qk))
        s.ncarry = len(nxt[1])
        if qk:
            p.v("v_cmp_lt_f32", VCC, sThr, vMx)
            p.br("s_cbranch_vccnz", f"L_stub_{tag}", VCC.regs())
            p.label(f"L_back_{tag}")
            s.stubs.append((tag, nx))
    def qp_tile(s, n, nxt, need, fillers=()):
        p = s.p
        hd = n & 1; e = n // 2; acc = (QP1, QP2)[hd]; ad = 'WX' if hd == 0 else 'W'
        mf = []
        for ks in range(2):
            for h in range(2):
                for t in range(3):
                    for uu in range(4):
                        D = acc(4 * h + uu, t)
                        mf.append(lambda ks=ks, h=h, D=D, uu=uu, t=t: p.mfma(D, Abuf(2 * ks + h)[4 * uu:4 * uu + 4], Xf(ks, t), 0 if (n < 2 and ks == 0) else D))
        I = s.rd_items(s.treads(ad, 1, 0), Abuf(2), "B2", 0, 7) + s.rd_items(s.treads(ad, 1, 1), Abuf(3), "B3", 8, 15)
        I.append(dict(fn=s.flag_read, cost=4, ds=True, est=16, slot=16, dl=0, grp="FL"))
        I += s.rd_items(nxt[0], Abuf(0), "N0", 24, 31) + s.rd_items(nxt[1], Abuf(1), "N1", 32, 39)
        blast = [it for it in I if it.get("grp") == "B3"][-1]
        ops = [lambda: p.s("s_mov_b32", sNeed, need)]
        if n < 15: ops += [lambda: p.v("v_add_u32", vW, wslot(n + 1), vTbase), lambda: p.v("v_xor_b32", vW1, 8, vW)]
        if hd == 1 and n < 15: ops.append(lambda: p.v("v_add_u32", vXa, xslot(e + 1), vXbase))
        M = s.misc_items(ops, 0, 23, "m")
        for m in M[1:]: m["deps"] = [blast]
        I += M
        I += [dict(fn=f, cost=4, est=2, dl=100 + i, seq="f") for i, f in enumerate(fillers)]
        s.hookcost = {24: 5}
        s.sched(mf, I, {0: "C0", 12: "C1", 24: "FL"}, {24: [s.rel_hook, lambda: s.check(f"p{n}")]}, carry={"C0": s.ncarry, "C1": 0})
        s.ncarry = len(nxt[1])
    def w2(s): return [s.treads('WX', 0, 0), s.treads('WX', 0, 1)]
    def rescale(s, sb, init):
        p = s.p
        m = [TMP[0], TMP[1], TMP[2]]; tm = TMP[3]; f = [TMP[4], TMP[5], TMP[6]]
        for t in range(3):
            r = [Sq(sb, al, t)[i] for al in range(4) for i in range(4)]
            p.v("v_max3_f32", m[t], r[0], r[1], r[2])
            for i in range(3, 15, 2): p.v("v_max3_f32", m[t], m[t], r[i], r[i + 1])
            p.v("v_max_f32", m[t], m[t], r[15])
        for op in ("v_permlane32_swap_b32", "v_permlane16_swap_b32"):
            for t in range(3):
                p.v("v_mov_b32", tm, m[t]); p.v(op, m[t], tm); p.v("v_max_f32", m[t], m[t], tm)
        for t in range(3):
            if not init:
                p.v("v_max_f32", m[t], 0, m[t])
                p.gen(f"v_exp_f32 {f[t]}, -{m[t]}", "trans", [f[t]], [m[t]])
            for i in range(4):
                if init: p.v("v_sub_f32", negm(t)[i], 0, m[t])
                else: p.v("v_sub_f32", negm(t)[i], negm(t)[i], m[t])
            for al in range(4):
                for i in range(4): p.v("v_sub_f32", Sq(sb, al, t)[i], Sq(sb, al, t)[i], m[t])
            if not init:
                for u in range(8):
                    for i in range(4): p.v("v_mul_f32", Oq(u, t)[i], f[t], Oq(u, t)[i])
                for i in range(4):
                    p.v("v_accvgpr_read_b32", tm, Lq(t)[i]); p.v("v_mul_f32", tm, f[t], tm); p.v("v_accvgpr_write_b32", Lq(t)[i], tm)
    def qconv_ops(s, q0, q1, dst):
        p = s.p; L = []
        for q in (q0, q1):
            for h in range(2): L.append(lambda q=q, h=h: p.v("v_pk_mul_f32", q[2 * h:2 * h + 2], q[2 * h:2 * h + 2], sC))
        for q in (q0, q1):
            for h in range(2): L.append(lambda q=q, h=h: p.v("v_cvt_pk_bf16_f32", q[2 * h], q[2 * h], q[2 * h + 1]))
        for h in range(2):
            L.append(lambda h=h: p.v("v_cndmask_b32", q0[2 * h + 1], q0[2 * h], q1[2 * h], sOdd))
            L.append(lambda h=h: p.v("v_cndmask_b32", q1[2 * h + 1], q1[2 * h], q0[2 * h], sOdd))
        for h in range(2): L.append(lambda h=h: p.v("v_accvgpr_write_b32", dst[h], q0[2 * h + 1]))
        for h in range(2): L.append(lambda h=h: p.v("v_accvgpr_write_b32", dst[2 + h], q1[2 * h + 1]))
        return L
    def qconv1_fillers(s):
        F = []
        for t in range(3):
            for sx in range(4):
                F += [f for f in s.qconv_ops(QP1(2 * sx, t), QP1(2 * sx + 1, t), Qf(t, sx))]
        return F
    def qconv2(s):
        p = s.p
        for sx in range(4):
            for t in range(3):
                t8 = V(12, 8)
                for a in range(2):
                    for i in range(4): p.v("v_accvgpr_read_b32", t8[4 * a + i], QP2(2 * sx + a, t)[i])
                for f in s.qconv_ops(t8[0:4], t8[4:8], Qf2(t, sx)): f()
    def zero_fillers(s):
        p = s.p; F = []
        for u in range(8):
            for t in range(3):
                for i in range(4): F.append(lambda u=u, t=t, i=i: p.v("v_mov_b32", Oq(u, t)[i], 0))
        for t in range(3):
            for i in range(4): F.append(lambda t=t, i=i: p.v("v_accvgpr_write_b32", Lq(t)[i], 0))
        return F
    def epi_ops(s, task):
        p = s.p; L = []
        inv = V(20, 2)
        for t in range(3):
            L.append(lambda t=t: p.v("v_accvgpr_read_b32", inv[0], Lq(t)[0]))
            L.append(lambda: p.v("v_rcp_f32", inv[0], inv[0]))
            if task == 1: L.append(lambda t=t: p.s("s_add_u32", sT0, sOo[1], t * 131072))
            for sx in range(4):
                q = TQ[(t * 4 + sx) % 3] if task == 0 else Of(8 + (sx >> 1), sx & 1, t)
                for a in range(2):
                    o = Oq(2 * sx + a, t)
                    for h in range(2): L.append(lambda o=o, h=h: p.v("v_pk_mul_f32", o[2 * h:2 * h + 2], o[2 * h:2 * h + 2], inv, extra=" op_sel_hi:[1,0]"))
                for a in range(2):
                    o = Oq(2 * sx + a, t)
                    for h in range(2): L.append(lambda o=o, h=h, q=q, a=a: p.v("v_cvt_pk_bf16_f32", q[2 * a + h], o[2 * h], o[2 * h + 1]))
                if task == 0:
                    for i in range(4): L.append(lambda i=i, q=q, sx=sx, t=t: p.v("v_accvgpr_write_b32", Of(sx >> 1, sx & 1, t)[i], q[i]))
                else:
                    L.append(lambda q=q, sx=sx: (p.bstore(q, vO, SRD_WS, sT0, sx * 1024, s.o.get("oflag", " sc1")), s.vmlog.append("st")))
        return L
    def store_r1(s):
        p = s.p
        for t in range(3):
            p.s("s_add_u32", sT0, sOo[0], t * 131072)
            for sx in range(4): p.bstore(Of(sx >> 1, sx & 1, t), vO, SRD_WS, sT0, sx * 1024, s.o.get("oflag", " sc1"))
    def k2(s): return [s.kreads(0), s.kreads(1)]
    def prologue(s, task, fillers=()):
        p = s.p
        need = s.req([("K", 16 * task + 1), ("V", 16 * task)])
        I = s.rd_items(s.kreads(2), Abuf(2), "A2", 0, 5) + s.rd_items(s.kreads(3), Abuf(3), "A3", 6, 11)
        I.append(dict(fn=s.flag_read, cost=4, ds=True, est=14, slot=14, dl=0, grp="FL"))
        I += s.rd_items(s.kreads(0), Abuf(0), "N0", 24, 31) + s.rd_items(s.kreads(1), Abuf(1), "N1", 32, 39)
        alast = [it for it in I if it.get("grp") == "A3"][-1]
        M = s.misc_items([lambda: p.s("s_mov_b32", sNeed, need)] + s.ring_adv(sK, NKS, KRING, vK, vKbase), 0, 23, "m")
        M[3]["deps"] = [alast]
        I += M
        I += [dict(fn=f, cost=4, est=0, dl=100 + i, seq="f") for i, f in enumerate(fillers)]
        s.hookcost = {24: 3}
        s.sched(s.kmf(0, czero=True), I, {0: "C0", 12: "C1", 24: "FL"}, {24: [lambda: s.check(f"pro{task}")]}, carry={"C0": s.ncarry, "C1": 0})
        s.ncarry = 4
        s.rescale(0, True)
    def task(s, task):
        p = s.p
        QSEL[0] = task
        s.stamp(4 + 5 * task)
        s.prologue(task, s.zero_fillers() if task == 1 else ())
        s.stamp(5 + 5 * task)
        p.s("s_mov_b32", sCnt, 0)
        p.s("s_mov_b32", sNeed, s.P + 32 * task - 1)
        def loop(name, count, body):
            p.raw(".p2align 6")
            p.label(name)
            p.nop(2)
            if s.o.get("iter"):
                p.gen("s_memtime s[100:101]", "smem"); p.wait(lg=0)
                p.s("s_lshl_b32", M0, sCnt, 1); p.nop(1)
                p.gen(f"s_movreld_b32 s{64 + 16 * task}, s100", "salu")
            body()
            p.s("s_add_u32", sCnt, sCnt, 1)
            if task == 0:
                p.s("s_cmp_eq_u32", sCnt, s.o.get("qc2at", 5)); p.br("s_cbranch_scc1", "L_qconv2")
                p.label("L_qconv2_back")
            else:
                p.s("s_cmp_eq_u32", sCnt, s.o.get("stat", 2)); p.br("s_cbranch_scc1", "L_str1")
                p.s("s_cmp_eq_u32", sCnt, s.o.get("stat", 2) + 2); p.br("s_cbranch_scc1", "L_dosig0")
                p.label("L_str1_back")
            p.s("s_cmp_lt_u32", sCnt, count)
            p.br("s_cbranch_scc1", name)
        def body():
            s.step(0, s.k2(), f"t{task}e"); s.step(1, s.k2(), f"t{task}o")
        loop(f"L_loop{task}", 7, body)
        s.stamp(6 + 5 * task)
        if task == 1: s.poll_issue(0, sPo)
        if task == 1:
            p.v("v_add_u32", vW, uslot(TO[0]), vTbase); p.v("v_xor_b32", vW1, 8, vW)
            p.v("v_add_u32", vOr[1], 131072, vO); p.v("v_add_u32", vOr[2], 262144, vO)
        s.step(0, [s.treads('V', 0, 0), s.treads('V', 0, 1)], f"t{task}x", need=s.req([("V", 16 * task + 15)] + ([("U", TO[0])] if task else [])))
        s.step(1, s.u2() if task else [[], []], f"t{task}z", qk=False)
        s.stamp(7 + 5 * task)
        if task == 0:
            for f in s.epi_ops(0): f()
        s.stamp(8 + 5 * task)
    def nonce_load(s):
        p = s.p
        p.gen("s_mov_b64 exec, 1", "salu")
        p.gen(f"global_load_dword {vPl4[2]}, {vO}, s[98:99] sc1", "vmem", [vPl4[2]], [vO, S(98, 2)])
        p.gen("s_mov_b64 exec, -1", "salu")
    def signal(s, field, word):
        p = s.p; tag = f"sig{field}"
        p.gen("s_mov_b64 exec, 1", "salu")
        p.v("v_mov_b32", vOne, 1)
        p.gen(f"ds_add_rtn_u32 {vPoll}, {vZ}, {vOne} offset:{FLAGS - 131072 + 4 + 4 * field}", "ds", [vPoll], [vZ, vOne])
        p.wait(lg=0)
        p.v("v_readfirstlane_b32", sT1, vPoll)
        p.s("s_cmp_eq_u32", sT1, 2)
        p.br("s_cbranch_scc0", f"L_{tag}")
        p.v("v_mov_b32", vPoll, sNon)
        p.bstore(vPoll, vO, SRD_DBG, word, field * 128, " sc1", op="buffer_store_dword")
        p.label(f"L_{tag}")
        p.gen("s_mov_b64 exec, -1", "salu")
    def poll_issue(s, field, word):
        p = s.p
        p.gen("s_mov_b64 exec, 1", "salu")
        p.bload(vPl4, vO, SRD_DBG, word, field * 128, " sc1")
        p.gen("s_mov_b64 exec, -1", "salu")
    def poll_test(s):
        p = s.p
        for i in range(4): p.v("v_xor_b32", vPl4[i], sNon, vPl4[i])
        p.v("v_or3_b32", vPl4[0], vPl4[0], vPl4[1], vPl4[2]); p.v("v_or_b32", vPl4[0], vPl4[0], vPl4[3])
        p.v("v_readfirstlane_b32", sT1, vPl4[0])
        p.s("s_cmp_eq_u32", sT1, 0)
    def poll_check(s, field, word):
        p = s.p; tag = f"pl{field}"
        s.poll_test()
        p.br("s_cbranch_scc0", f"L_gspin_{tag}")
        p.label(f"L_gspun_{tag}")
        s.gspins.append((tag, field, word))
    def oloads(s, n, dyn=False):
        p = s.p; r, i, half = n >> 3, (n >> 1) & 3, n & 1
        def ld(ks, t):
            if dyn: p.bload(Of(n, ks, t), vOr[t], SRD_OR, sOc, ks * 1024, " sc1")
            else: p.bload(Of(n, ks, t), vOr[t], SRD_OR, sOH[r][i], half * 2048 + ks * 1024, s.o.get("olflag", " sc1"))
            s.vmlog.append(n)
        return [(lambda ks=ks, t=t: ld(ks, t)) for ks in range(2) for t in range(3)]
    def vmwait(s, tag):
        n = len(s.vmlog) - 1 - max(i for i, x in enumerate(s.vmlog) if x == tag)
        s.p.wait(vm=min(n, 63))
    def u2(s): return [s.treads('W', 0, 0), s.treads('W', 0, 1)]
    def next_oc(s):
        p = s.p
        return [lambda: p.s("s_lshr_b32", sOc, sTm, 1), lambda: p.s("s_add_u32", sOc, sOc, sNc), lambda: p.s("s_and_b32", sOc, sOc, 3),
                lambda: p.s("s_lshl_b32", sT1, sKg, 2), lambda: p.s("s_add_u32", sOc, sOc, sT1), lambda: p.s("s_lshl_b32", sOc, sOc, 13),
                lambda: p.s("s_add_u32", sOc, sOc, sOo[0]), lambda: p.s("s_and_b32", sT1, sTm, 1), lambda: p.s("s_lshl_b32", sT1, sT1, 11),
                lambda: p.s("s_add_u32", sOc, sOc, sT1), lambda: p.s("s_add_u32", sTm, sTm, 1)]
    def op_tile(s, n, nxt, nextu=None, loads=(), pre=(), misc=(), czero=False):
        p = s.p
        mf = []
        for ks in range(2):
            for h in range(2):
                for t in range(3):
                    for uu in range(4):
                        D = OPa(4 * h + uu, t)
                        mf.append(lambda ks=ks, h=h, D=D, uu=uu, t=t: p.mfma(D, Abuf(2 * ks + h)[4 * uu:4 * uu + 4], Of(n, ks, t), 0 if (czero and ks == 0) else D))
        I = s.rd_items(s.treads('W', 1, 0), Abuf(2), "B2", 0, 7) + s.rd_items(s.treads('W', 1, 1), Abuf(3), "B3", 8, 15)
        if nextu is not None: I.append(dict(fn=s.flag_read, cost=4, ds=True, est=16, slot=16, dl=0, grp="FL"))
        I += s.rd_items(nxt[0], Abuf(0), "N0", 24, 31) + s.rd_items(nxt[1], Abuf(1), "N1", 32, 39)
        blast = [it for it in I if it.get("grp") == "B3"][-1]
        if nextu is not None:
            M = s.misc_items([lambda: p.s("s_mov_b32", sNeed, s.req([("U", nextu)])), lambda: p.v("v_add_u32", vW, uslot(nextu), vTbase),
                              lambda: p.v("v_xor_b32", vW1, 8, vW)], 0, 23, "m")
            for m in M[1:]: m["deps"] = [blast]
            I += M
        if misc: I += s.misc_items(list(misc), 0, 20, "oc")
        I += [dict(fn=f, cost=4, est=e, dl=40 + i, seq="ld") for i, (f, e) in enumerate(loads)]
        s.hookcost = {24: 5 if nextu is not None else 2}
        hk = [s.rel_hook] + ([lambda: s.check(f"u{n}")] if nextu is not None else [])
        s.sched(mf, I, {0: "C0", 12: "C1", 24: "FL" if nextu is not None else "B3"}, {0: list(pre), 24: hk}, carry={"C0": s.ncarry, "C1": 0})
        s.ncarry = len(nxt[1])
    def tail(s):
        p = s.p
        s.stamp(0, True)
        r1 = [f for n in range(2, 8) for f in s.oloads(n)]
        r2 = {n: s.oloads(n) for n in range(10, 16)}
        pc = s.o.get("pc", 6)
        epi = s.epi_ops(1)
        for j, n in enumerate(TO):
            pre = []; loads = []
            if j >= 4: pre.append(lambda n=n: s.vmwait(n))
            if j == 0: pre += [lambda: p.wait(vm=0), lambda: s.poll_check(0, sPo)]; loads = [(f, 0) for f in epi[:58]]
            if j == 1: loads = [(f, 0) for f in epi[58:]]
            if j == 2: loads = [(f, 0) for f in r1[:18]]
            if j == 3: loads = [(f, 0) for f in r1[18:]]; pre += [lambda: s.vmwait("st"), lambda: s.signal(1, sFo)]
            if j == pc - 1: loads = loads + [(lambda: (s.poll_issue(1, sPo), s.vmlog.append("pl")), 40)]
            if j == pc: pre += [lambda: s.vmwait("pl"), lambda: s.poll_check(1, sPo)]
            if j == pc: loads = [(f, 0) for m in (10, 11, 12) for f in r2[m]]
            if j == pc + 1: loads = [(f, 0) for m in (13, 14) for f in r2[m]]
            if j == pc + 2: loads = [(f, 0) for f in r2[15]]
            last = j == len(TO) - 1
            s.op_tile(n, [[], []] if last else s.u2(), None if last else TO[j + 1], loads, pre, czero=(j == 0))
            if j in (0, 1, 2, 4, 6, 8, 10, 12): s.stamp(1 + (0, 1, 2, 4, 6, 8, 10, 12).index(j), True)
        s.stamp(14); s.stamp(9, True)
        p.s("s_mul_i32", sT0, sWave, 6144)
        for sx in range(1, 4):
            p.s("s_add_u32", sCnt, sKg, sx); p.s("s_and_b32", sCnt, sCnt, 3); p.s("s_mul_i32", sCnt, sCnt, 55296); p.s("s_add_u32", sCnt, sCnt, sT0)
            for t in range(3):
                p.s("s_add_u32", sT1, sCnt, (sx - 1) * 18432 + t * 2048)
                for a in range(2): p.bstore(OPa(2 * sx + a, t), vO, SRD_PT, sT1, a * 1024, s.o.get("pflag", " sc1"))
        p.v("v_and_b32", vOut, 15, vLane); p.v("v_lshlrev_b32", vOut, 11, vOut); p.v("v_and_b32", V(135), 48, vLane); p.v("v_add_u32", vOut, vOut, V(135))
        for a in range(2):
            for t in range(3):
                for i in range(4): p.v("v_accvgpr_read_b32", QP1(a, t)[i], OPa(a, t)[i])
        s.stamp(10, True)
        p.wait(vm=0)
        s.stamp(11, True)
        s.signal(2, sFl)
        s.poll_issue(2, sPl); p.wait(vm=0)
        s.stamp(12, True)
        s.poll_check(2, sPl)
        s.stamp(13, True)
        p.s("s_mul_i32", sCnt, sKg, 55296); p.s("s_add_u32", sCnt, sCnt, sT0)
        Pt = lambda src, t, a: V(152 + ((t * 3 + src) * 2 + a) * 4, 4)
        for t in range(3):
            for src in range(3):
                p.s("s_add_u32", sT1, sCnt, src * 18432 + t * 2048)
                for a in range(2): p.bload(Pt(src, t, a), vO, SRD_PT, sT1, a * 1024, s.o.get("plflag", " sc1"))
        for t in range(3):
            p.wait(vm=6 * (2 - t) + t)
            for a in range(2):
                for h in range(2):
                    q = [QP1(a, t)[2 * h:2 * h + 2]] + [Pt(src, t, a)[2 * h:2 * h + 2] for src in range(3)]
                    p.v("v_pk_add_f32", q[0], q[0], q[1]); p.v("v_pk_add_f32", q[2], q[2], q[3]); p.v("v_pk_add_f32", q[0], q[0], q[2])
            q0, q1 = QP1(0, t), QP1(1, t); o = Pt(0, t, 0)
            for q in (q0, q1):
                for h in range(2): p.v("v_cvt_pk_bf16_f32", q[2 * h], q[2 * h], q[2 * h + 1])
            for h in range(2):
                p.v("v_cndmask_b32", o[h], q0[2 * h], q1[2 * h], sOdd)
                p.v("v_cndmask_b32", o[2 + h], q1[2 * h], q0[2 * h], sOdd)
            p.s("s_mov_b32", sT1, t * 32768)
            p.bstore(o, vOut, SRD_OUT, sT1, 0)
    def dma_groups(s, kind, n, regs=None, alt=False):
        p = s.p; G = []
        sA = sT1 if alt else sT0
        if kind in "KV":
            lds = kslot(n) if kind == "K" else vslot(n); srd = SRD_K if kind == "K" else SRD_V
            def grp(q):
                if regs is None: p.s("s_mov_b32", M0, lds + q * 4096)
                p.s("s_add_u32", sA, sKV[n // 16], (n % 16) * TILE + q * 4096)
                for o in range(4):
                    b = 4 * q + o
                    vo = vDk[(b >> 1) & 3] if kind == "K" else vDv[(b >> 1) & 1]
                    if regs is None: p.dma(vo, srd, sA, o * 1024, s.NT)
                    else: p.bload(regs[4 * b:4 * b + 4], vo, srd, sA, o * 1024, s.NT)
            return [(lambda q=q: grp(q)) for q in range(4)], 16
        if kind == "U":
            r, i, half = n >> 3, (n >> 1) & 3, n & 1
            def grp(q):
                if q == 0:
                    p.s("s_add_u32", sWr, sNc, i); p.s("s_and_b32", sWr, sWr, 3); p.s("s_lshl_b32", sA, sKg, 2); p.s("s_add_u32", sWr, sWr, sA)
                    p.s("s_lshl_b32", sWr, sWr, 1); p.s("s_xor_b32", sA, sPar, r); p.s("s_add_u32", sWr, sWr, sA); p.s("s_lshl_b32", sWr, sWr, 17)
                if regs is None: p.s("s_mov_b32", M0, uslot(n) + q * 4096)
                p.s("s_add_u32", sA, sWr, half * 65536 + (32 * (q >> 1) + 8 * (q & 1)) * 1024)
                for o in range(4):
                    if regs is None: p.dma(vDu[o], SRD_WO, sA, o * 1024, s.o.get("wflag", ""))
                    else: p.bload(regs[16 * q + 4 * o:16 * q + 4 * o + 4], vDu[o], SRD_WO, sA, o * 1024, s.o.get("wflag", ""))
            return [(lambda q=q: grp(q)) for q in range(4)], 16
        if kind == "X":
            def grp(q):
                if q == 0:
                    p.s("s_add_u32", sXr, sRot, n % 8); p.s("s_and_b32", sXr, sXr, 7); p.s("s_lshl_b32", sXr, sXr, 7)
                else: p.s("s_add_u32", sXr, sXr, 32768)
                p.s("s_mov_b32", M0, xslot(n) + q * 4096)
                for o in range(4 if q < 4 else 2): p.dma(vDx[o], SRD_X, sXr, o * 1024, s.o.get("xflag", ""))
            return [(lambda q=q: grp(q)) for q in range(5)], 18
        def grp(q):
            if q == 0:
                p.s("s_add_u32", sWr, sRot, n // 2); p.s("s_and_b32", sWr, sWr, 7); p.s("s_lshl_b32", sWr, sWr, 19)
                p.s("s_add_u32", sWr, sWr, sWo[n & 1])
            else: p.s("s_add_u32", sWr, sWr, 131072)
            p.s("s_mov_b32", M0, wslot(n) + q * 4096)
            for o in range(4): p.dma(vDw[o], SRD_WQ, sWr, o * 1024, s.o.get("wflag", ""))
        return [(lambda q=q: grp(q)) for q in range(4)], 16
    def dma_tile(s, kind, n, regs=None):
        if kind in s.o.get("skipk", ""): return 0
        G, c = s.dma_groups(kind, n, regs)
        for g in G: g()
        return c
    def late_setup(s): pass
    def publish(s, n):
        p = s.p
        p.s("s_max_u32", sPm, sPm, n)
        p.v("v_mov_b32", vLf, sPm)
        p.ds_write("ds_write_b32", vLz, vLf, FLAGS - 131072)
    def loader(s):
        p = s.p
        p.s("s_mov_b32", sF, 0); p.s("s_mov_b32", sPm, 0)
        p.v("v_mov_b32", vLz, 131072)
        p.v("v_lshlrev_b32", vO, 4, vLane)
        lag = s.o.get("lag", 1)
        if s.o.get("fake") or s.o.get("indep"): s.publish(1000)
        vm = []
        where = {}; items = 0; pub = 0
        def landed(l):
            pend = [x[1] for x in vm[len(vm) - l:] if x[1] is not None] if l else []
            return min(pend) if pend else items
        for u, (op, kind, n, nf) in enumerate(s.T):
            if s.o.get("fake"): break
            if s.o.get("loadonly") and u >= s.o["loadonly"]: break
            if nf > 0 and not s.o.get("loadonly"):
                p.s("s_cmp_ge_u32", sF, nf)
                p.br("s_cbranch_scc1", f"L_free_{u}")
                p.s("s_mov_b32", sNeed, nf); p.s("s_mov_b32", sPub, items); p.s("s_mov_b32", sPb1, landed(1))
                p.gen(f"s_call_b64 {sRet}, L_poll", "salu", [sRet])
                p.label(f"L_free_{u}")
            if op == "dma":
                vm.append((s.dma_tile(kind, n), items)); items += 1
            elif op == "stage":
                where[(kind, n)] = len(vm)
                vm.append((s.dma_tile(kind, n, stage_regs(s.reg[(kind, n)])), None))
            else:
                p.wait(vm=min(63, sum(x[0] for x in vm[where[(kind, n)] + 1:])))
                regs = stage_regs(s.reg[(kind, n)])
                p.v("v_add_u32", V(31), {"K": kslot, "V": vslot, "U": uslot}[kind](n), vO)
                for b in range(16): p.ds_write("ds_write_b128", V(31), regs[4 * b:4 * b + 4], b * 1024)
                p.wait(lg=0)
                items += 1
            l = min(lag if u >= s.nP0 else s.o.get("lag0", 2), len(vm))
            if op != "write": p.wait(vm=sum(x[0] for x in vm[len(vm) - l:]))
            if landed(l) > pub:
                pub = landed(l); s.publish(pub)
            if u in (1, 4, 10, 20, 30, 40): s.stamp({1: 1, 4: 2, 10: 3, 20: 4, 30: 5, 40: 6}[u])
        done = list(range(items + 1))
        for l in range(lag - 1, -1, -1):
            p.wait(vm=16 * l)
            s.publish(done[len(done) - 1 - l])
        s.stamp(13)
        s.stamp_out()
        p.br("s_branch", "L_k1_end")
        p.label("L_poll")
        q = V(32, 4)
        p.ds_read("ds_read_b128", q, vLz, FLAGS - 131072 + 16); p.wait(lg=0)
        p.v("v_min3_u32", q[0], q[0], q[1], q[2]); p.v("v_readfirstlane_b32", sF, q[0])
        p.s("s_cmp_ge_u32", sF, sNeed); p.br("s_cbranch_scc1", "L_poll_ret")
        p.wait(vm=16)
        s.publish(sPb1)
        p.ds_read("ds_read_b128", q, vLz, FLAGS - 131072 + 16); p.wait(lg=0)
        p.v("v_min3_u32", q[0], q[0], q[1], q[2]); p.v("v_readfirstlane_b32", sF, q[0])
        p.s("s_cmp_ge_u32", sF, sNeed); p.br("s_cbranch_scc1", "L_poll_ret")
        p.wait(vm=0)
        s.publish(sPub)
        p.label("L_poll_spin")
        s.bound()
        p.ds_read("ds_read_b128", q, vLz, FLAGS - 131072 + 16); p.wait(lg=0)
        p.v("v_min3_u32", q[0], q[0], q[1], q[2]); p.v("v_readfirstlane_b32", sF, q[0])
        p.s("s_cmp_ge_u32", sF, sNeed); p.br("s_cbranch_scc0", "L_poll_spin")
        p.label("L_poll_ret")
        p.gen(f"s_setpc_b64 {sRet}", "branch", [], [sRet])
    srd = G1.K1.srd
    def build(s, name):
        p = s.p
        p.raw(f".globl {name}"); p.raw(".p2align 8"); p.raw(f".type {name},@function"); p.label(name)
        p.s("s_cmp_ge_u32", S(2), 256); p.br("s_cbranch_scc1", "L_k1_end")
        if s.o.get("stamps"): p.gen("s_memtime s[100:101]", "smem", [S(100, 2)])
        p.smem("s_load_dwordx16", S(64, 16), S(0, 2), 0)
        p.smem("s_load_dwordx8", S(80, 8), S(0, 2), 64)
        p.smem("s_load_dwordx2", S(88, 2), S(0, 2), 96)
        p.v("v_lshrrev_b32", V(1), 6, V(0))
        p.v("v_readfirstlane_b32", sWave, V(1))
        p.v("v_and_b32", vLane, 63, V(0))
        p.v("v_mov_b32", vZ, 131072)
        for i in range(4): p.v("v_mov_b32", V(252 + i), 0)
        p.ds_write("ds_write_b128", vZ, V(252, 4), FLAGS - 131072); p.ds_write("ds_write_b128", vZ, V(252, 4), FLAGS - 131072 + 16)
        p.s("s_mov_b32", sSpin, 0)
        sb = S(4); sh = S(5); sP = S(8)
        if s.o.get("mapz"):
            p.s("s_bfe_u32", sP, S(2), 0x10002)
            p.s("s_bfe_u32", sb, S(2), 0x10001); p.s("s_lshl_b32", sb, sb, 2); p.s("s_bfe_u32", S(9), S(2), 0x20003); p.s("s_add_u32", sb, sb, S(9))
            p.s("s_and_b32", sh, S(2), 1); p.s("s_lshl_b32", sh, sh, 3); p.s("s_lshr_b32", S(10), S(2), 5); p.s("s_add_u32", sh, sh, S(10))
        else:
            p.s("s_bfe_u32", sP, S(2), 0x10003)
            p.s("s_bfe_u32", sb, S(2), 0x10002); p.s("s_lshl_b32", sb, sb, 2); p.s("s_bfe_u32", S(9), S(2), 0x20004); p.s("s_add_u32", sb, sb, S(9))
            p.s("s_and_b32", sh, S(2), 3); p.s("s_lshl_b32", sh, sh, 2); p.s("s_lshr_b32", S(10), S(2), 6); p.s("s_add_u32", sh, sh, S(10))
            p.s("s_lshl_b32", S(10), S(10), 1)
        p.s("s_lshl_b32", sh, sh, 1)
        if s.o.get("norot"): p.s("s_mov_b32", sRot, 0)
        elif s.o.get("rot") == "b": p.s("s_lshl_b32", sRot, S(9), 1)
        elif s.o.get("rot") == "h": p.s("s_mov_b32", sRot, S(10))
        else:
            p.s("s_lshl_b32", sRot, S(9), 1); p.s("s_lshr_b32", S(10), S(10), 1); p.s("s_add_u32", sRot, sRot, S(10))
        if s.o.get("noswap"): p.s("s_mov_b32", S(11), 0)
        else: p.s("s_and_b32", S(11), S(9), 1)
        for tk in range(2):
            if tk: p.s("s_xor_b32", S(11), S(11), 1)
            p.s("s_lshl_b32", sKV[tk], S(11), 18); p.s("s_lshl_b32", sWo[tk], S(11), 8); p.s("s_lshl_b32", sOo[tk], S(11), 12)
        g = V(13); c16 = V(14); t1 = V(15); t2 = V(16); ph = V(17); t3 = V(18); x4 = V(19)
        p.v("v_lshrrev_b32", g, 4, vLane); p.v("v_and_b32", c16, 15, vLane)
        p.v("v_mov_b32", t3, 0x78)
        p.v("v_and_b32", x4, 3, vLane); p.v("v_bfe_u32", t2, vLane, 2, 2)
        p.v("v_lshlrev_b32", t1, 6, g)
        p.v("v_lshl_add_u32", ph, t2, 13, t1); p.v("v_lshl_add_u32", vDw[0], x4, 4, ph)
        p.v("v_xor_b32", vDw[2], 16, vDw[0])
        p.v("v_add_u32", vDw[3], 3 * (32768 - 1024), vDw[2]); p.v("v_add_u32", vDw[2], 2 * (32768 - 1024), vDw[2])
        p.v("v_add_u32", vDw[1], 32768 - 1024, vDw[0])
        p.v("v_lshl_add_u32", t1, t2, 8, t1)
        for k in range(4):
            p.v("v_xor_b32", ph, PHI[k], x4); p.v("v_lshl_add_u32", vDk[k], ph, 4, t1)
        for k in range(2):
            p.v("v_xor_b32", ph, 2 * k, x4); p.v("v_lshl_add_u32", vDv[k], ph, 4, t1)
        p.v("v_bfe_u32", t2, vLane, 2, 3); p.v("v_lshrrev_b32", t1, 5, vLane); p.v("v_lshlrev_b32", t1, 6, t1)
        p.v("v_lshl_add_u32", t2, t2, 10, t1)
        for k in range(2):
            p.v("v_bfe_u32", t1, vLane, 4, 1); p.v("v_add_u32", t1, 2 * k, t1); p.v("v_lshlrev_b32", t1, 1, t1)
            p.v("v_lshrrev_b32", t1, t1, t3); p.v("v_and_b32", t1, 3, t1)
            p.v("v_xor_b32", t1, t1, x4); p.v("v_lshl_add_u32", vDx[k], t1, 4, t2)
        p.v("v_add_u32", vDx[2], 2 * 7168, vDx[0]); p.v("v_add_u32", vDx[3], 3 * 7168, vDx[1]); p.v("v_add_u32", vDx[1], 7168, vDx[1])
        p.wait(lg=0)
        ptr = lambda i: S(64 + 2 * i, 2)
        so = S(6); so2 = S(7)
        p.s("s_cmp_eq_u32", sP, 1)
        for i in range(5): p.s("s_cselect_b64", ptr(i), ptr(5 + i), ptr(i))
        p.s("s_mul_i32", so, sb, 147456)
        s.srd(SRD_X, ptr(0), so, 147456)
        p.s("s_lshl_b32", so, sh, 8); p.s("s_sub_u32", so2, 4194304, so)
        s.srd(SRD_WQ, ptr(3), so, so2)
        p.s("s_lshl_b32", so, sb, 5); p.s("s_add_u32", so, so, sh); p.s("s_lshl_b32", so, so, 18)
        s.srd(SRD_K, ptr(1), so, 524288); s.srd(SRD_V, ptr(2), so, 524288)
        p.s("s_lshl_b32", so, sP, 3); p.s("s_add_u32", so, so, sb)
        p.s("s_mul_i32", so, so, 9); p.s("s_min_u32", so2, sWave, 2); p.s("s_mul_i32", so2, so2, 3); p.s("s_add_u32", so, so, so2)
        p.s("s_lshl_b32", so, so, 17); p.s("s_lshl_b32", so2, sh, 12); p.s("s_add_u32", so, so, so2)
        p.s("s_sub_u32", so2, 18874368, so)
        s.srd(SRD_WS, ptr(12), so, so2)
        def stamp_init():
            if s.o.get("stamps"):
                p.s("s_lshl_b32", so, S(2), 2); p.s("s_add_u32", so, so, sWave); p.s("s_lshl_b32", so, so, 6)
                p.s("s_add_u32", so, so, 64 << 20)
                s.srd(S(12, 4), ptr(12), so, 64)
                for i in range(16): p.s("s_mov_b64", S(64 + 2 * i, 2), 0)
            s.stamp(0)
        s.stamp_init = stamp_init; s.ptr = ptr

        p.s("s_lshl_b32", so, sP, 3); p.s("s_add_u32", S(96), so, sb)
        p.s("s_lshl_b32", S(97), sP, 10); p.s("s_mul_i32", so, sb, 144 * 2048); p.s("s_add_u32", S(97), S(97), so)
        p.s("s_lshr_b32", sPar, sOo[0], 12)
        p.s("s_lshr_b32", sKg, sh, 3); p.s("s_bfe_u32", sNc, sh, 0x20001); p.s("s_mov_b32", sPB, S(96))
        p.barrier()
        p.s("s_cmp_eq_u32", sWave, 3); p.br("s_cbranch_scc1", "L_loader")
        p.s("s_mov_b64", S(98, 2), ptr(11))
        p.s("s_or_b32", so, S(2), sWave); p.s("s_cmp_eq_u32", so, 0); p.br("s_cbranch_scc0", "L_nononce")
        p.gen("s_memrealtime s[6:7]", "smem", [S(6, 2)]); p.wait(lg=0)
        p.s("s_or_b32", sNon, S(6), 1)
        p.gen("s_mov_b64 exec, 1", "salu")
        p.v("v_mov_b32", V(130), sNon); p.v("v_mov_b32", V(132), 0)
        p.gen("global_store_dword v132, v130, s[98:99] sc1", "vmem", [], [V(130), V(132), S(98, 2)])
        p.gen("s_mov_b64 exec, -1", "salu")
        p.label("L_nononce")
        p.s("s_mul_i32", so, sPB, 9); p.s("s_mul_i32", so2, sWave, 3); p.s("s_add_u32", so, so, so2); p.s("s_lshl_b32", so, so, 17)
        s.srd(SRD_OR, ptr(12), so, 3 * 131072)
        p.s("s_lshl_b32", so, sPB, 2); p.s("s_add_u32", so, so, sNc); p.s("s_mul_i32", sPl, so, 384)
        p.s("s_lshl_b32", so2, sKg, 2); p.s("s_add_u32", sFl, sPl, so2)
        p.s("s_mul_i32", so, so, 4 * 55296); p.s("s_add_u32", so, so, PARTOFF)
        s.srd(SRD_PT, ptr(12), so, 4 * 55296)
        p.s("s_lshl_b32", so, sPB, 2); p.s("s_add_u32", so, so, sKg); p.s("s_mul_i32", sPo, so, 384)
        p.s("s_lshl_b32", so2, sNc, 2); p.s("s_add_u32", sFo, sPo, so2)
        p.s("s_mul_i32", so, sWave, 48 * 2048); p.s("s_add_u32", so, so, S(97)); p.s("s_lshl_b32", so2, sNc, 8); p.s("s_add_u32", so, so, so2)
        p.s("s_lshl_b32", so2, sKg, 6); p.s("s_add_u32", so, so, so2); p.s("s_sub_u32", so2, 2359296, so)
        s.srd(SRD_OUT, ptr(10), so, so2)
        s.srd(SRD_DBG, ptr(12), FLAGOFF, 64 * 384)
        for i in range(4):
            p.s("s_add_u32", so, sNc, i); p.s("s_and_b32", so, so, 3); p.s("s_lshl_b32", so2, sKg, 2); p.s("s_add_u32", so, so, so2); p.s("s_lshl_b32", so, so, 13)
            p.s("s_add_u32", sOH[0][i], so, sOo[0]); p.s("s_add_u32", sOH[1][i], so, sOo[1])
        stamp_init()
        if not s.o.get("nowarm"):
            p.gen("s_getpc_b64 s[90:91]", "salu", [S(90, 2)])
            p.label("L_pc")
            p.gen(f"s_sub_u32 s90, s90, L_pc-{name}", "salu", [S(90)], [S(90)]); p.s("s_subb_u32", S(91), S(91), 0)
            p.s("s_lshr_b32", S(6), S(2), 3); p.s("s_mul_i32", S(6), S(6), 3); p.s("s_add_u32", S(6), S(6), sWave); p.s("s_lshl_b32", S(6), S(6), 10)
            p.v("v_lshlrev_b32", V(140), 4, vLane); p.v("v_add_u32", V(140), S(6), V(140))
            p.gen(f"v_min_u32 v140, L_k1_end-{name}-16, v140", "valu", [V(140)], [V(140)])
            p.gen("global_load_dwordx4 v[136:139], v140, s[90:91]", "vmem", [V(136, 4)], [V(140), S(90, 2)])
        if s.o.get("loadonly") and not s.o.get("indep"): p.br("s_branch", "L_k1_end")
        p.v("v_and_b32", t1, 1, g); p.v("v_xor_b32", t1, t1, c16); p.v("v_lshlrev_b32", t1, 4, t1)
        p.v("v_and_b32", t2, 1, c16); p.v("v_lshl_add_u32", t1, t2, 3, t1); p.v("v_lshl_add_u32", vTbase, g, 11, t1)
        p.v("v_and_b32", t1, 1, g); p.v("v_cmp_eq_u32", sOdd, 1, t1)
        p.v("v_lshrrev_b32", t1, 2, c16); p.v("v_lshlrev_b32", t2, 1, t1); p.v("v_lshrrev_b32", ph, t2, t3); p.v("v_and_b32", ph, 3, ph)
        p.v("v_xor_b32", ph, g, ph)
        p.v("v_lshlrev_b32", t1, 11, t1); p.v("v_and_b32", t2, 3, c16); p.v("v_lshl_add_u32", t1, t2, 6, t1)
        p.v("v_lshl_add_u32", vKbase, ph, 4, t1)
        p.v("v_lshrrev_b32", t1, 3, c16); p.v("v_lshlrev_b32", t1, 10, t1); p.v("v_and_b32", t2, 7, c16); p.v("v_lshl_add_u32", t1, t2, 6, t1)
        p.v("v_lshl_add_u32", vXbase, ph, 4, t1)
        p.s("s_mul_i32", S(6), sWave, 6144); p.v("v_add_u32", vXbase, S(6), vXbase)
        p.v("v_lshlrev_b32", t1, 11, g); p.v("v_lshrrev_b32", t2, 2, c16); p.v("v_lshl_add_u32", t1, t2, 6, t1)
        p.v("v_and_b32", t2, 1, g); p.v("v_lshl_add_u32", t1, t2, 5, t1); p.v("v_and_b32", t2, 3, c16); p.v("v_lshl_add_u32", vVbase, t2, 3, t1)
        p.v("v_lshlrev_b32", vO, 4, vLane)
        p.s("s_lshl_b32", S(6), sWave, 2); p.s("s_add_u32", S(6), S(6), FLAGS + 16); p.v("v_mov_b32", vFa, S(6)); p.v("v_mov_b32", vEp, 1)
        p.s("s_mov_b32", sK, kslot(0)); p.s("s_mov_b32", sV, vslot(0))
        p.v("v_add_u32", vK, sK, vKbase); p.v("v_add_u32", vV, sV, vVbase); p.v("v_xor_b32", vV1, 32, vV)
        p.v("v_add_u32", vW, wslot(0), vTbase); p.v("v_xor_b32", vW1, 8, vW); p.v("v_add_u32", vXa, xslot(0), vXbase)
        p.s("s_mov_b32", sThr, f2u(float("inf") if s.o.get("nothr") else THR)); p.s("s_mov_b32", sC[0], f2u(CSCALE)); p.s("s_mov_b32", sC[1], f2u(CSCALE))
        p.v("v_mov_b32", V(13), 0x3F803F80)
        for i in range(4): p.v("v_accvgpr_write_b32", ONES[i], V(13))
        for f in s.zero_fillers(): f()
        s.stamp(1)
        p.s("s_mov_b32", sNeed, s.req([("W", 0), ("X", 0)]))
        s.flag_read(); p.wait(lg=0); s.check("init")
        s.stamp(2)
        s.prime(s.treads('WX', 0, 0), s.treads('WX', 0, 1)); s.ncarry = 8
        for n in range(16):
            p.cmt(f"---- P0 tile {n}")
            if n < 15:
                a = 'W' if n % 2 == 0 else 'WX'
                nr = [s.treads(a, 0, 0), s.treads(a, 0, 1)]
                need = s.req([("W", n + 1), ("X", (n + 1) // 2)])
            else:
                nr = s.k2(); need = s.req([("K", 0)])
            s.qp_tile(n, nr, need, s.qconv1_fillers() if n == 15 else ())
        p.wait(vm=0)
        s.stamp(3)
        s.task(0)
        p.s("s_mov_b32", sNeed, s.req([("K", 16)]))
        s.flag_read(); p.wait(lg=0); s.check("bnd")
        s.prime(*s.k2()); s.ncarry = 4
        s.task(1)
        s.tail()
        s.stamp(13); s.stamp(14, True)
        s.stamp_out()
        p.br("s_branch", "L_k1_end")
        p.label("L_qconv2")
        s.qconv2()
        p.br("s_branch", "L_qconv2_back")
        p.label("L_str1")
        s.store_r1(); s.nonce_load()
        p.br("s_branch", "L_str1_back")
        p.label("L_getnonce")
        s.bound(); s.nonce_load()
        p.label("L_dosig0")
        p.wait(vm=0)
        p.v("v_readfirstlane_b32", sNon, vPl4[2])
        p.s("s_cmp_eq_u32", sNon, 0); p.br("s_cbranch_scc1", "L_getnonce")
        s.signal(0, sFo)
        p.br("s_branch", "L_str1_back")
        for tag in s.spins:
            p.label(f"L_spin_{tag}")
            s.bound()
            s.flag_read(); p.wait(lg=0)
            p.v("v_readfirstlane_b32", sF, vFl)
            p.s("s_cmp_ge_u32", sF, sNeed)
            p.br("s_cbranch_scc0", f"L_spin_{tag}")
            p.br("s_branch", f"L_spun_{tag}")
        for tag, nx in s.stubs:
            p.label(f"L_stub_{tag}")
            p.gen(f"s_call_b64 {sRet}, L_rare{nx}", "salu", [sRet])
            p.br("s_branch", f"L_back_{tag}")
        for nx in range(2):
            p.label(f"L_rare{nx}")
            p.nop(10)
            s.rescale(nx, False)
            p.nop(4)
            p.gen(f"s_setpc_b64 {sRet}", "branch", [], [sRet])
        for tag, field, word in s.gspins:
            p.label(f"L_gspin_{tag}")
            s.bound()
            p.gen("s_sleep 1", "salu")
            s.poll_issue(field, word); p.wait(vm=0)
            s.poll_test()
            p.br("s_cbranch_scc0", f"L_gspin_{tag}")
            p.br("s_branch", f"L_gspun_{tag}")
        p.label("L_loader")
        p.s("s_lshl_b32", so, sNc, 8); p.s("s_sub_u32", so2, 4194304, so)
        s.srd(SRD_WO, ptr(4), so, so2)
        p.v("v_bfe_u32", t2, vLane, 2, 2); p.v("v_add_u32", t1, sKg, g); p.v("v_and_b32", t1, 3, t1); p.v("v_lshlrev_b32", t1, 6, t1)
        p.v("v_lshl_add_u32", t1, t2, 10, t1); p.v("v_lshl_add_u32", vDu[0], x4, 4, t1)
        p.v("v_xor_b32", vDu[2], 16, vDu[0])
        p.v("v_add_u32", vDu[1], 15 * 1024, vDu[0]); p.v("v_add_u32", vDu[3], 17 * 1024, vDu[2]); p.v("v_add_u32", vDu[2], 2 * 1024, vDu[2])
        if s.o.get("lind"):
            for r in vDk + vDv: p.v("v_lshlrev_b32", r, 4, vLane)
            p.v("v_and_b32", t1, 15, vLane); p.v("v_lshlrev_b32", t1, 4, t1); p.v("v_lshl_add_u32", vDw[0], g, 13, t1)
            for o in range(1, 4): p.v("v_add_u32", vDw[o], o * (32768 - 1024), vDw[0])
            p.v("v_and_b32", t1, 7, vLane); p.v("v_lshlrev_b32", t1, 4, t1); p.v("v_lshrrev_b32", t2, 3, vLane); p.v("v_lshl_add_u32", vDx[0], t2, 10, t1)
            for o in range(1, 4): p.v("v_add_u32", vDx[o], o * 7168, vDx[0])
        stamp_init()
        s.loader()
        p.label("L_k1_end")
        p.gen("s_endpgm", "branch")
        return p
vZ = V(251)

def one(fn, **o):
    k = K1(o); p = k.build(NAME + "_kernel")
    print(fn, "instrs", p.count(), "auto nops", p.nops, "over", k.over, file=sys.stderr)
    open(fn, "w").write(G1.assemble(["; @launch grid=(256,1,1) block=(256,1,1) lds=163840"], [p], [kdesc(NAME + "_kernel")]))
def full(fn, o1=None, o2=None):
    k = K1(o1); p1 = k.build("attn_kernel"); p2 = G1.build_k2("oproj_kernel", o2)
    t = G1.assemble(["; @launch kernel=attn_kernel grid=(256,1,1) block=(256,1,1) lds=163840",
                  "; @launch kernel=oproj_kernel grid=(256,1,1) block=(256,1,1) lds=147456"], [p1, p2],
                 [kdesc("attn_kernel"), kdesc("oproj_kernel", vgpr=256, accum=256)])
    open(fn, "w").write(t)
if __name__ == "__main__":
    R = dict(rot="h")
    one("v7z.s", mapz=True, **R)
    one("v7m.s", **R)
    one("v7mb.s", rot="b")
    one("v7mn.s", norot=True)
    one("v7rt.s", stamps=True, rt=True, **R)
    one("v7rtf.s", stamps=True, rt=True, fine=True, **R)
```

```python
import sys, math, struct
from asmlib import *
import gen as G1
NAME = G1.NAME
f2u = G1.f2u
TILE = 16384; XT = 18432
NKS, NVS = 5, 4
KRING, VRING = 0, 5 * TILE
X0RING = 7 * TILE
FLAGS = 148 * 1024
PHI = [0, 2, 3, 1]
def kslot(n): return KRING + (n % NKS) * TILE
def vslot(n): return VRING + (n % NVS) * TILE
def wslot(n): return [2, 6, 3, 4][n % 4] * TILE
def xslot(e): return X0RING + (e % 2) * XT
TO = [0, 1, 8, 9, 2, 3, 4, 5, 6, 7, 10, 11, 12, 13, 14, 15]
USL = [("K", 27), ("K", 28), ("K", 29), ("V", 28), ("K", 30), ("V", 29), ("K", 31), ("V", 30), ("V", 31)]
def uslot(n):
    k, m = USL[TO.index(n) % 9]
    return kslot(m) if k == "K" else vslot(m)
vLane = V(0); vKbase = V(1); vTbase = V(2); vK = V(3); vV = V(4); vW = V(5)
vW1 = V(11); vV1 = V(6); vXa = V(7); vVbase = V(8); vO = V(9); vMx = V(10); vXbase = V(129)
vFl = V(248); vLf = V(30); vLz = V(40); vFa = V(249); vEp = V(250)
vDx = [V(20 + i) for i in range(4)]; vDk = [V(24 + i) for i in range(4)]; vDv = [V(28), V(29)]; vDw = [V(36 + i) for i in range(4)]
def stage_regs(i): return V(64 + 64 * i, 64) if i < 3 else A(64 * (i - 3), 64)
TMP = [V(12 + i) for i in range(8)]
TQ = [V(12, 4), V(16, 4), V(252, 4)]
def negm(t): return V(20 + 4 * t, 4)
SB = [32, 80]
def Sq(b, al, t): return V(SB[b] + (al * 3 + t) * 4, 4)
def Pq(ks, t): return V(128 + (ks * 3 + t) * 4, 4)
def Oq(u, t): return V(152 + (u * 3 + t) * 4, 4)
def QP1(u, t): return V(32 + (u * 3 + t) * 4, 4)
def QP2(u, t): return A((u * 3 + t) * 4, 4)
QBASE = [96]
def Qf(t, s): return A(QBASE[0] + (t * 4 + s) * 4, 4)
def Qf2(t, s): return A((s * 3 + t) * 4, 4)
QSEL = [0]
def Qcur(t, s): return (Qf, Qf2)[QSEL[0]](t, s)
def Abuf(par): return A(144 + 16 * (par & 3), 16)
def Xf(ks, t): return A(208 + (ks * 3 + t) * 4, 4)
def Lq(t): return A(232 + 4 * t, 4)
ONES = A(244, 4)
sWave = S(3)
SRD_X = S(16, 4); SRD_K = S(24, 4); SRD_V = S(28, 4); SRD_WQ = S(40, 4); SRD_WS = S(48, 4)
sK = S(52); sV = S(53); sNeed = S(54); sCnt = S(55); sF = S(56); sThr = S(57)
sC = S(58, 2); sRet = S(60, 2); sT0 = S(62); sT1 = S(63); sRot = S(20); sWr = S(21); sXr = S(22); sPub = S(23); sSpin = S(32); sKV = [S(33), S(34)]; sWo = [S(35), S(36)]; sOo = [S(37), S(38)]; sOdd = S(46, 2)
SRD_OR = S(16, 4); SRD_PT = S(24, 4); SRD_OUT = S(28, 4); SRD_DBG = S(40, 4); SRD_WO = S(48, 4)
sOH = [[S(20), S(21), S(22), S(23)], [S(33), S(34), S(35), S(36)]]
sKg = S(4); sNc = S(5); sPar = S(8); sPB = S(9); sPo = S(10); sPl = S(11)
vDu = [V(44 + i) for i in range(4)]
vOr = [V(9), V(7), V(19)]; vPl4 = V(252, 4); vPoll = V(252); vOne = V(253); vOut = V(134)
FLAGOFF = 2 * 18874368; sNon = S(39); sFo = S(44); sFl = S(45); sPb1 = S(45); sPm = S(44); sOc = S(96); sTm = S(97)
OFB = {8: 32, 9: 56, 2: 80, 3: 104, 4: 128, 5: 152, 6: 176, 7: 200, 10: 224, 11: 32, 12: 56, 13: 80, 14: 104, 15: 128}
def Of(n, ks, t):
    if n < 2: return A(48 + (n * 6 + ks * 3 + t) * 4, 4)
    return V(OFB[n] + (ks * 3 + t) * 4, 4)
def OPa(u, t):
    i = u * 3 + t
    return A(4 * i, 4) if i < 12 else A(96 + 4 * (i - 12), 4)
PARTOFF = 18874368
CSCALE = G1.CSCALE; THR = 16.0

PLANS = {}
class K1:
    def __init__(s, opts=None):
        s.p = Prog(); s.par = 0; s.over = []; s.vmlog = []; s.gspins = []; s.hookcost = {}; s.stubs = []; s.spins = []; s.o = opts or {}
        s.NT = s.o.get("kvflag", " nt")
        if s.o.get("nomfma"): s.p.mfma = lambda *a, **k: None
        if s.o.get("nods"): s.p.ds_read = lambda *a, **k: None
        if s.o.get("lin"):
            od = s.p.ds_read
            s.p.ds_read = lambda op, d, addr, off: od(op, d, vO if op != "ds_read_b32" else addr, off)
        if s.o.get("noexp"):
            ov = s.p.v
            def vv(op, *a, **k):
                if op in ("v_exp_f32", "v_cvt_pk_bf16_f32", "v_max3_f32"): return
                ov(op, *a, **k)
            s.p.v = vv
        s.stream()
    def stream(s):
        rel = {}; ep = 0
        for n in range(16):
            ep += 1; rel[("W", n)] = ep
            if n % 2 == 0: rel[("X", n // 2)] = ep
        for J in range(32):
            ep += 1; rel[("V", J)] = ep
            if J % 16 < 15: rel[("K", J + 1)] = ep
            if J % 16 == 0: rel[("K", J)] = ep
        for n in TO:
            ep += 1; rel[("U", n)] = ep
        def need(k, n):
            if k == "U":
                j = TO.index(n)
                return rel[("U", TO[j - 9])] if j >= 9 else rel[USL[j]]
            if k == "W": return rel[("W", n - 4)] if n >= 4 else 0
            if k == "X": return rel[("X", n - 2)] if n >= 2 else 0
            if k == "K": return [0, 0, rel[("W", 12)], rel[("W", 14)], rel[("W", 15)]][n] if n < 5 else rel[("K", n - 5)]
            return [0, rel[("W", 13)], rel[("X", 6)], rel[("X", 7)]][n] if n < 4 else rel[("V", n - 4)]
        staged = s.o.get("staged", [])
        spos = s.o.get("spos", [3, 5, 7, 8, 9, 10, 11])
        T = []
        for n in range(16):
            if n % 2 == 0: T.append(("dma", "X", n // 2))
            T.append(("dma", "W", n))
            kv0 = s.o.get("kvpos", {5: ("K", 0), 8: ("K", 1), 11: ("V", 0)})
            if n in kv0: T.append(("dma",) + kv0[n])
        s.nP0 = len(T)
        names = [("K", 2), ("V", 1), ("V", 2), ("K", 3), ("V", 3), ("K", 4), ("V", 4)]
        for n in range(5, 32): names += [("K", n), ("V", n)]
        skip = s.o.get("skip", 4); nw = 0
        reg = {t: i for i, t in enumerate(staged)}
        nxt = (max(names.index(t) for t in staged) + 1) if staged else len(names)
        for t in names:
            if t in reg:
                T.append(("write",) + t); nw += 1
                if nw % skip != 0 and nxt < len(names):
                    reg[names[nxt]] = reg[t]; T.append(("stage",) + names[nxt]); nxt += 1
            else: T.append(("dma",) + t)
        nus = s.o.get("nus", 0)
        ust = TO[s.o.get("us0", 0):][:nus]
        if s.o.get("upos"):
            for n, w in zip(ust, s.o["upos"]):
                at = T.index(("dma", "W", w)) + 1
                T[at:at] = [("stage", "U", n)]; s.nP0 += 1
        else:
            at = T.index(("dma",) + s.o.get("usat", ("K", 21)))
            T[at:at] = [("stage", "U", n) for n in ust]
        for i, n in enumerate(ust): reg[("U", n)] = i
        T += [("write" if n in ust else "dma", "U", n) for n in TO]
        s.reg = reg; s.pairs = set()
        s.T = [(op, k, n, 0 if op == "stage" else need(k, n)) for op, k, n in T]
        s.pos = {}
        for op, k, n, _ in s.T:
            if op != "stage": s.pos[(k, n)] = len(s.pos)
        s.P = s.pos[("K", 5)] - 6
        for J in list(range(14)) + list(range(16, 30)):
            assert s.req([("K", J + 2), ("V", J + 1)]) <= s.P + 2 * J + 1, J
    def req(s, tiles): return 1 + max(s.pos[t] for t in tiles)
    def stamp(s, i, fine=False):
        if s.o.get("both"):
            M = {0: 0, 5: 1, 6: 2, 10: 3, 11: 4, 12: 5, 13: 6}
            if i in M and not fine:
                s.p.gen(f"s_memrealtime {S(64 + 2 * M[i], 2)}", "smem", [S(64 + 2 * M[i], 2)])
                s.p.gen(f"s_memtime {S(64 + 2 * (8 + M[i]), 2)}", "smem", [S(64 + 2 * (8 + M[i]), 2)])
            return
        if s.o.get("iter"):
            if i in (6, 11): s.p.gen(f"s_memtime {S(64 + 14 + (16 if i == 11 else 0), 2)}", "smem")
            return
        if s.o.get("stamps") and bool(s.o.get("fine")) == fine: s.p.gen(f"s_memtime {S(64 + 2 * i, 2)}", "smem", [S(64 + 2 * i, 2)])
    def stamp_out(s):
        if not s.o.get("stamps"): return
        p = s.p
        p.wait(lg=0)
        if s.o.get("abs"): p.s("s_mov_b32", S(64 + 30), S(64))
        elif s.o.get("entry"):
            p.s("s_sub_u32", S(100), S(64), S(100)); p.s("s_add_u32", S(64 + 30), S(100), S(64))
        elif not s.o.get("iter"): p.s("s_add_u32", S(64 + 30), sSpin, S(64))
        p.v("v_mov_b32", V(1), 0)
        for i in range(16):
            p.v("v_mov_b32", V(2), S(64 + 2 * i))
            if s.o.get("dbgout"):
                if i == 0: continue
                p.v("v_subrev_u32", V(2), S(64), V(2))
            p.bstore(V(2), V(1), S(12, 4), 0, 4 * i, op="buffer_store_dword")
    def flag_read(s): s.p.ds_read("ds_read_b32", vFl, vFa, 0) if False else s.p.ds_read("ds_read_b32", vFl, vZ, FLAGS - 131072)
    def release(s):
        p = s.p
        p.ds_write("ds_write_b32", vFa, vEp, 0)
        p.v("v_add_u32", vEp, 1, vEp)
    def check(s, tag):
        p = s.p
        if s.o.get("nochk"): return
        p.v("v_readfirstlane_b32", sF, vFl)
        p.s("s_cmp_ge_u32", sF, sNeed)
        p.br("s_cbranch_scc0", f"L_spin_{tag}")
        p.label(f"L_spun_{tag}")
        s.spins.append(tag)
    def bound(s):
        p = s.p
        p.s("s_add_u32", sSpin, sSpin, 1); p.s("s_cmp_gt_u32", sSpin, 1 << 22); p.br("s_cbranch_scc1", "L_k1_end")
    def kreads(s, al):
        ks, a = al >> 1, al & 1
        return [lambda buf, sx=sx: s.p.ds_read("ds_read_b128", buf[4 * sx:4 * sx + 4], vK, (8 * ks + a) * 1024 + 256 * sx) for sx in range(4)]
    def treads(s, addr, ks, half):
        out = []
        for uu in range(4):
            u = 4 * half + uu; sp, ap = u >> 1, u & 1
            for a in range(2):
                if addr == 'V':
                    out.append(lambda buf, uu=uu, a=a, sp=sp, ap=ap: s.p.ds_read("ds_read_b64_tr_b16", buf[4 * uu + 2 * a:4 * uu + 2 * a + 2],
                                                                         (vV, vV1)[ap], (8 * ks + a) * 1024 + 256 * sp))
                else:
                    out.append(lambda buf, uu=uu, a=a, sp=sp, ap=ap: s.p.ds_read("ds_read_b64_tr_b16", buf[4 * uu + 2 * a:4 * uu + 2 * a + 2],
                                                                         (vW, vW1)[ap], (8 * ks + a) * 1024 + 256 * sp))
        if addr == 'WX' and half == 0:
            for t in range(3):
                out.append(lambda buf, t=t: s.p.ds_read("ds_read_b128", Xf(ks, t), vXa, t * 2048 + ks * 512))
        return out
    def kbatch(s, al, sb, czero=False):
        mf = []
        for sx in range(4):
            for t in range(3):
                D = Sq(sb, al, t)
                C = (0 if czero else negm(t)) if sx == 0 else D
                mf.append(lambda buf, D=D, C=C, sx=sx, t=t: s.p.mfma(D, buf[4 * sx:4 * sx + 4], Qcur(t, sx), C))
        return dict(reads=s.kreads(al), mf=mf)
    def tbatch(s, addr, ks, half, acc, bop, withl=False, czero=False):
        mf = []
        for t in range(3):
            for uu in range(4):
                D = acc(4 * half + uu, t)
                mf.append(lambda buf, D=D, uu=uu, t=t: s.p.mfma(D, buf[4 * uu:4 * uu + 4], bop(ks, t), 0 if czero else D))
            if withl: mf.append(lambda buf, t=t: s.p.mfma(Lq(t), ONES, bop(ks, t), Lq(t)))
        return dict(reads=s.treads(addr, ks, half), mf=mf)
    def prime(s, r0, r1):
        for f in r0: f(Abuf(0))
        for f in r1: f(Abuf(1))
    def plan(s, nslot, items, waits):
        at = {}
        pre = [[] for _ in range(nslot + 1)]; post = [[] for _ in range(nslot)]
        ds = [it for it in items if it["ds"]]; nd = [it for it in items if not it["ds"]]
        fill = [0] * (nslot + 1)
        dsi = 0
        def ready(it, slot):
            if it["id"] in at or it["est"] > slot: return False
            for d in it["deps"]:
                if at.get(d["id"], 10 ** 9) >= slot: return False
            pv = it.get("prev")
            return pv is None or pv["id"] in at
        for slot in range(nslot):
            for it in nd:
                if it["id"] not in at and it.get("hard") is not None and it["hard"] <= slot:
                    chain = [it]
                    while chain[-1].get("prev") is not None and chain[-1]["prev"]["id"] not in at: chain.append(chain[-1]["prev"])
                    for c in reversed(chain):
                        for d in c["deps"]:
                            if d["id"] not in at:
                                if d["ds"]: return None
                                at[d["id"]] = slot - 1; pre[slot].append(d); fill[slot] += d["cost"]
                        at[c["id"]] = slot - 1; pre[slot].append(c); fill[slot] += c["cost"]
            if slot in waits:
                if any(it["grp"] == waits[slot] and it["id"] not in at for it in ds): return None
                lead = min([slot - at[it["id"]] for it in ds if it["grp"] == waits[slot]] or [99])
                fill[slot] += max(0, (s.o.get("lead", 7) - lead)) * 16
            fixedc = (4 if (slot + 1) in waits else 0) + 4 * s.hookcost.get(slot + 1, 0)
            budget = 8 - fixedc; fill[slot + 1] += fixedc
            if dsi < len(ds) and ds[dsi]["slot"] <= slot and ds[dsi]["est"] <= slot:
                it = ds[dsi]; dsi += 1; at[it["id"]] = slot; post[slot].append(it); budget -= 4; fill[slot + 1] += 4
            while budget > 0:
                c = [it for it in nd if it["cost"] <= budget and ready(it, slot)]
                if not c: break
                it = min(c, key=lambda x: (x["dl"], x["id"]))
                if it["cost"] == 4 and budget == 8 and len([x for x in c if x["cost"] == 4]) < 2 and any(x["cost"] == 8 for x in c):
                    it = min([x for x in c if x["cost"] == 8], key=lambda x: (x["dl"], x["id"]))
                at[it["id"]] = slot; post[slot].append(it); budget -= it["cost"]; fill[slot + 1] += it["cost"]
        for it in items:
            if it["id"] not in at:
                pre[nslot].append(it); fill[nslot] += it["cost"] + (8 if it["ds"] else 0)
        for g, extra in (("N0", 0), ("N1", 4)):
            l = [nslot + extra - at.get(it["id"], nslot) for it in ds if it["grp"] == g]
            if l: fill[nslot] += max(0, s.o.get("lead", 7) - min(l)) * 16
        cost = sum(max(16, 8 + f) for f in fill[1:]) + fill[0]
        return cost, pre, post
    def sched(s, mf, items, waits, hooks=None, carry=None, opt=None):
        p = s.p; hooks = hooks or {}; carry = carry or {}
        last = {}
        for i, it in enumerate(items):
            it.setdefault("deps", []); it.setdefault("ds", False); it.setdefault("grp", None); it["id"] = i
            if it.get("seq"):
                it["prev"] = last.get(it["seq"]); last[it["seq"]] = it
        ds = [it for it in items if it["ds"]]
        best = s.plan(len(mf), items, waits)
        if opt:
            key = (opt, len(ds))
            if key in PLANS:
                for it, sl in zip(ds, PLANS[key]): it["slot"] = sl
                best = s.plan(len(mf), items, waits)
            else:
                import random
                rnd = random.Random(1)
                for itn in range(s.o.get("optit", 1500)):
                    it = rnd.choice(ds); old = it["slot"]
                    it["slot"] = max(it["est"], min(len(mf) - 1, old + rnd.choice([-3, -2, -1, 1, 2, 3])))
                    r = s.plan(len(mf), items, waits)
                    if r is not None and r[0] <= best[0]: best = r
                    else: it["slot"] = old
                PLANS[key] = [it["slot"] for it in ds]
        cost, pre, post = best
        dslog = []
        def emit(it):
            it["fn"]()
            if it["ds"]: dslog.append(it["grp"])
        for slot, m in enumerate(mf):
            for it in pre[slot]: emit(it)
            if slot in waits:
                g = waits[slot]
                if g in dslog: n = len(dslog) - 1 - max(i for i, x in enumerate(dslog) if x == g)
                else: n = carry[g] + len(dslog)
                if not s.o.get("nowait"): p.wait(lg=min(n, 15))
            for h in hooks.get(slot, ()):
                if h() == "ds": dslog.append(None)
            m()
            for it in post[slot]: emit(it)
        for it in pre[len(mf)]: emit(it)
        s.over.append(cost)
    def rd_items(s, reads, buf, grp, est, dl, e0=None):
        n = len(reads)
        return [dict(fn=(lambda f=f: f(buf)), cost=4, ds=True, est=(est if e0 is None else e0), slot=est + ((dl - est + 1) * i) // n, dl=0, grp=grp) for i, f in enumerate(reads)]
    def misc_items(s, ops, est, dl, seq):
        n = len(ops)
        return [dict(fn=f, cost=4, est=est, dl=est + (dl - est) * (i + 1) / n, hard=dl + 1, seq=seq) for i, f in enumerate(ops)]
    def ring_adv(s, sreg, n, base, vdst, vbase):
        p = s.p
        return [lambda: p.s("s_add_u32", sreg, sreg, TILE),
                lambda: (p.s("s_cmp_eq_u32", sreg, base + n * TILE), p.s("s_cselect_b32", sreg, base, sreg)),
                lambda: p.v("v_add_u32", vdst, sreg, vbase)]
    def kmf(s, sb, czero=False):
        mf = []
        for al in range(4):
            for sx in range(4):
                for t in range(3):
                    D = Sq(sb, al, t)
                    C = (0 if czero else negm(t)) if sx == 0 else D
                    mf.append(lambda al=al, D=D, C=C, sx=sx, t=t: s.p.mfma(D, Abuf(al)[4 * sx:4 * sx + 4], Qcur(t, sx), C))
        return mf
    def rel_hook(s):
        s.release(); return "ds"
    def step(s, cur, nxt, tag, qk=True, need=None, inc=2):
        p = s.p; nx = cur ^ 1
        o = 48 if qk else 0
        mf = s.kmf(nx) if qk else []
        for ks in range(2):
            for t in range(3):
                for u in range(8):
                    mf.append(lambda ks=ks, t=t, u=u: p.mfma(Oq(u, t), Abuf(2 * ks + (u >> 2))[4 * (u & 3):4 * (u & 3) + 4], Pq(ks, t), Oq(u, t)))
                mf.append(lambda ks=ks, t=t: p.mfma(Lq(t), ONES, Pq(ks, t), Lq(t)))
        I = []
        if qk:
            I += s.rd_items(s.kreads(2), Abuf(2), "A2", 1, 8, 0) + s.rd_items(s.kreads(3), Abuf(3), "A3", 9, 16, 0)
            I += s.rd_items(s.treads('V', 0, 0), Abuf(0), "V0", 17, 30, 12) + s.rd_items(s.treads('V', 0, 1), Abuf(1), "V1", 31, 43, 24)
            I += s.rd_items(s.treads('V', 1, 0), Abuf(2), "V2", 44, 55, 36) + s.rd_items(s.treads('V', 1, 1), Abuf(3), "V3", 56, 67, 48)
            I.append(dict(fn=s.flag_read, cost=4, ds=True, est=60, slot=68, dl=0, grp="FL"))
        else:
            I += s.rd_items(s.treads('V', 1, 0), Abuf(2), "V2", 0, 9) + s.rd_items(s.treads('V', 1, 1), Abuf(3), "V3", 10, 19)
        I += s.rd_items(nxt[0], Abuf(0), "N0", o + 38 - len(nxt[0]) // 2, o + 46, o + 27) + s.rd_items(nxt[1], Abuf(1), "N1", o + 47 - len(nxt[0]) // 2, o + 53, o + 27)
        span = s.o.get('span', 88) if qk else 40
        k = 0
        for ks in range(2):
            for t in range(3):
                hd = o + 27 * ks + 9 * t
                for a in range(2):
                    q = Sq(cur, 2 * ks + a, t); P = Pq(ks, t); E = []
                    for r in range(4):
                        k += 1
                        E.append(dict(fn=(lambda q=q, r=r: p.v("v_exp_f32", q[r], q[r])), cost=8, est=0, dl=min(hd - 3, span * k / 48.0), hard=hd))
                    I += E
                    for h in range(2):
                        I.append(dict(fn=(lambda q=q, P=P, a=a, h=h: p.v("v_cvt_pk_bf16_f32", P[2 * a + h], q[2 * h], q[2 * h + 1])), cost=4, est=0,
                                      dl=min(hd - 2, span * k / 48.0 + 1), hard=hd, deps=E[2 * h:2 * h + 2]))
        if qk:
            regs = [(al, Sq(nx, al, t)[r]) for al in range(4) for t in range(3) for r in range(4)]
            ops = [(0, lambda: p.v("v_max3_f32", vMx, regs[0][1], regs[1][1], regs[2][1]))]
            for i in range(3, 47, 2): ops.append((regs[i + 1][0], lambda i=i: p.v("v_max3_f32", vMx, vMx, regs[i][1], regs[i + 1][1])))
            ops.append((3, lambda: p.v("v_max_f32", vMx, vMx, regs[47][1])))
            for i, (al, f) in enumerate(ops): I.append(dict(fn=f, cost=4, est=12 * al + 16, dl=30 + 70 * (i + 1) / 24.0, seq="mx"))
            I += s.misc_items(s.ring_adv(sK, NKS, KRING, vK, vKbase), 24, 70, "rk")
            I += s.misc_items([(lambda: p.s("s_add_u32", sNeed, sNeed, inc)) if need is None else (lambda: p.s("s_mov_b32", sNeed, need))], 0, 70, "nd")
        vlast = [it for it in I if it.get("grp") == "V3"][-1]
        ra = s.misc_items(s.ring_adv(sV, NVS, VRING, vV, vVbase) + [lambda: p.v("v_xor_b32", vV1, 32, vV)], o + 0, o + 26, "rv")
        ra[2]["deps"] = [vlast]
        I += ra
        if qk: waits = {0: "C0", 12: "C1", 24: "A2", 36: "A3", 48: "V0", 52: "V1", 75: "FL"}
        else: waits = {0: "C0", 4: "C1", 27: "V2", 31: "V3"}
        if qk:
            hooks = {75: [s.rel_hook, lambda: s.check(tag)]}; s.hookcost = {75: 5}
        else:
            hooks = {31: [s.rel_hook]}; s.hookcost = {31: 2}
        s.sched(mf, I, waits, hooks, carry={"C0": s.ncarry, "C1": 0}, opt=("step", qk))
        s.ncarry = len(nxt[1])
        if qk:
            p.v("v_cmp_lt_f32", VCC, sThr, vMx)
            p.br("s_cbranch_vccnz", f"L_stub_{tag}", VCC.regs())
            p.label(f"L_back_{tag}")
            s.stubs.append((tag, nx))
    def qp_tile(s, n, nxt, need, fillers=()):
        p = s.p
        hd = n & 1; e = n // 2; acc = (QP1, QP2)[hd]; ad = 'WX' if hd == 0 else 'W'
        mf = []
        for ks in range(2):
            for h in range(2):
                for t in range(3):
                    for uu in range(4):
                        D = acc(4 * h + uu, t)
                        mf.append(lambda ks=ks, h=h, D=D, uu=uu, t=t: p.mfma(D, Abuf(2 * ks + h)[4 * uu:4 * uu + 4], Xf(ks, t), 0 if (n < 2 and ks == 0) else D))
        I = s.rd_items(s.treads(ad, 1, 0), Abuf(2), "B2", 0, 7) + s.rd_items(s.treads(ad, 1, 1), Abuf(3), "B3", 8, 15)
        I.append(dict(fn=s.flag_read, cost=4, ds=True, est=16, slot=16, dl=0, grp="FL"))
        I += s.rd_items(nxt[0], Abuf(0), "N0", 24, 31) + s.rd_items(nxt[1], Abuf(1), "N1", 32, 39)
        blast = [it for it in I if it.get("grp") == "B3"][-1]
        ops = [lambda: p.s("s_mov_b32", sNeed, need)]
        if n < 15: ops += [lambda: p.v("v_add_u32", vW, wslot(n + 1), vTbase), lambda: p.v("v_xor_b32", vW1, 8, vW)]
        if hd == 1 and n < 15: ops.append(lambda: p.v("v_add_u32", vXa, xslot(e + 1), vXbase))
        M = s.misc_items(ops, 0, 23, "m")
        for m in M[1:]: m["deps"] = [blast]
        I += M
        I += [dict(fn=f, cost=4, est=2, dl=100 + i, seq="f") for i, f in enumerate(fillers)]
        s.hookcost = {24: 5}
        s.sched(mf, I, {0: "C0", 12: "C1", 24: "FL"}, {24: [s.rel_hook, lambda: s.check(f"p{n}")]}, carry={"C0": s.ncarry, "C1": 0})
        s.ncarry = len(nxt[1])
    def w2(s): return [s.treads('WX', 0, 0), s.treads('WX', 0, 1)]
    def rescale(s, sb, init):
        p = s.p
        m = [TMP[0], TMP[1], TMP[2]]; tm = TMP[3]; f = [TMP[4], TMP[5], TMP[6]]
        for t in range(3):
            r = [Sq(sb, al, t)[i] for al in range(4) for i in range(4)]
            p.v("v_max3_f32", m[t], r[0], r[1], r[2])
            for i in range(3, 15, 2): p.v("v_max3_f32", m[t], m[t], r[i], r[i + 1])
            p.v("v_max_f32", m[t], m[t], r[15])
        for op in ("v_permlane32_swap_b32", "v_permlane16_swap_b32"):
            for t in range(3):
                p.v("v_mov_b32", tm, m[t]); p.v(op, m[t], tm); p.v("v_max_f32", m[t], m[t], tm)
        for t in range(3):
            if not init:
                p.v("v_max_f32", m[t], 0, m[t])
                p.gen(f"v_exp_f32 {f[t]}, -{m[t]}", "trans", [f[t]], [m[t]])
            for i in range(4):
                if init: p.v("v_sub_f32", negm(t)[i], 0, m[t])
                else: p.v("v_sub_f32", negm(t)[i], negm(t)[i], m[t])
            for al in range(4):
                for i in range(4): p.v("v_sub_f32", Sq(sb, al, t)[i], Sq(sb, al, t)[i], m[t])
            if not init:
                for u in range(8):
                    for i in range(4): p.v("v_mul_f32", Oq(u, t)[i], f[t], Oq(u, t)[i])
                for i in range(4):
                    p.v("v_accvgpr_read_b32", tm, Lq(t)[i]); p.v("v_mul_f32", tm, f[t], tm); p.v("v_accvgpr_write_b32", Lq(t)[i], tm)
    def qconv_ops(s, q0, q1, dst):
        p = s.p; L = []
        for q in (q0, q1):
            for h in range(2): L.append(lambda q=q, h=h: p.v("v_pk_mul_f32", q[2 * h:2 * h + 2], q[2 * h:2 * h + 2], sC))
        for q in (q0, q1):
            for h in range(2): L.append(lambda q=q, h=h: p.v("v_cvt_pk_bf16_f32", q[2 * h], q[2 * h], q[2 * h + 1]))
        for h in range(2):
            L.append(lambda h=h: p.v("v_cndmask_b32", q0[2 * h + 1], q0[2 * h], q1[2 * h], sOdd))
            L.append(lambda h=h: p.v("v_cndmask_b32", q1[2 * h + 1], q1[2 * h], q0[2 * h], sOdd))
        for h in range(2): L.append(lambda h=h: p.v("v_accvgpr_write_b32", dst[h], q0[2 * h + 1]))
        for h in range(2): L.append(lambda h=h: p.v("v_accvgpr_write_b32", dst[2 + h], q1[2 * h + 1]))
        return L
    def qconv1_fillers(s):
        F = []
        for t in range(3):
            for sx in range(4):
                F += [f for f in s.qconv_ops(QP1(2 * sx, t), QP1(2 * sx + 1, t), Qf(t, sx))]
        return F
    def qconv2(s):
        p = s.p
        for sx in range(4):
            for t in range(3):
                t8 = V(12, 8)
                for a in range(2):
                    for i in range(4): p.v("v_accvgpr_read_b32", t8[4 * a + i], QP2(2 * sx + a, t)[i])
                for f in s.qconv_ops(t8[0:4], t8[4:8], Qf2(t, sx)): f()
    def zero_fillers(s):
        p = s.p; F = []
        for u in range(8):
            for t in range(3):
                for i in range(4): F.append(lambda u=u, t=t, i=i: p.v("v_mov_b32", Oq(u, t)[i], 0))
        for t in range(3):
            for i in range(4): F.append(lambda t=t, i=i: p.v("v_accvgpr_write_b32", Lq(t)[i], 0))
        return F
    def epi_ops(s, task):
        p = s.p; L = []; s.est = []
        inv = V(20, 2)
        for t in range(3):
            L.append(lambda t=t: p.v("v_accvgpr_read_b32", inv[0], Lq(t)[0]))
            L.append(lambda: p.v("v_rcp_f32", inv[0], inv[0]))
            for sx in range(4):
                q = TQ[(t * 4 + sx) % 3] if task == 0 else Of(8 + (sx >> 1), sx & 1, t)
                for a in range(2):
                    o = Oq(2 * sx + a, t)
                    for h in range(2): L.append(lambda o=o, h=h: p.v("v_pk_mul_f32", o[2 * h:2 * h + 2], o[2 * h:2 * h + 2], inv, extra=" op_sel_hi:[1,0]"))
                for a in range(2):
                    o = Oq(2 * sx + a, t)
                    for h in range(2): L.append(lambda o=o, h=h, q=q, a=a: p.v("v_cvt_pk_bf16_f32", q[2 * a + h], o[2 * h], o[2 * h + 1]))
                if task == 0:
                    for i in range(4): L.append(lambda i=i, q=q, sx=sx, t=t: p.v("v_accvgpr_write_b32", Of(sx >> 1, sx & 1, t)[i], q[i]))
                else:
                    s.est.append(lambda q=q, sx=sx, t=t: (p.s("s_add_u32", sT0, sOo[1], t * 131072), p.bstore(q, vO, SRD_WS, sT0, sx * 1024, s.o.get("oflag", " sc1")), s.vmlog.append("st")))
        return L
    def store_r1(s):
        p = s.p
        for t in range(3):
            p.s("s_add_u32", sT0, sOo[0], t * 131072)
            for sx in range(4): p.bstore(Of(sx >> 1, sx & 1, t), vO, SRD_WS, sT0, sx * 1024, s.o.get("oflag", " sc1"))
    def k2(s): return [s.kreads(0), s.kreads(1)]
    def prologue(s, task, fillers=()):
        p = s.p
        need = s.req([("K", 16 * task + 1), ("V", 16 * task)])
        I = s.rd_items(s.kreads(2), Abuf(2), "A2", 0, 5) + s.rd_items(s.kreads(3), Abuf(3), "A3", 6, 11)
        I.append(dict(fn=s.flag_read, cost=4, ds=True, est=14, slot=14, dl=0, grp="FL"))
        I += s.rd_items(s.kreads(0), Abuf(0), "N0", 24, 31) + s.rd_items(s.kreads(1), Abuf(1), "N1", 32, 39)
        alast = [it for it in I if it.get("grp") == "A3"][-1]
        M = s.misc_items([lambda: p.s("s_mov_b32", sNeed, need)] + s.ring_adv(sK, NKS, KRING, vK, vKbase), 0, 23, "m")
        M[3]["deps"] = [alast]
        I += M
        I += [dict(fn=f, cost=4, est=0, dl=100 + i, seq="f") for i, f in enumerate(fillers)]
        s.hookcost = {24: 3}
        s.sched(s.kmf(0, czero=True), I, {0: "C0", 12: "C1", 24: "FL"}, {24: [lambda: s.check(f"pro{task}")]}, carry={"C0": s.ncarry, "C1": 0})
        s.ncarry = 4
        s.rescale(0, True)
    def task(s, task):
        p = s.p
        QSEL[0] = task
        s.stamp(4 + 5 * task)
        s.prologue(task, s.zero_fillers() if task == 1 else ())
        s.stamp(5 + 5 * task)
        p.s("s_mov_b32", sCnt, 0)
        p.s("s_mov_b32", sNeed, s.P + 32 * task - 1)
        def loop(name, count, body):
            p.raw(".p2align 6")
            p.label(name)
            p.nop(2)
            if s.o.get("iter"):
                p.gen("s_memtime s[100:101]", "smem"); p.wait(lg=0)
                p.s("s_lshl_b32", M0, sCnt, 1); p.nop(1)
                p.gen(f"s_movreld_b32 s{64 + 16 * task}, s100", "salu")
            body()
            p.s("s_add_u32", sCnt, sCnt, 1)
            if task == 0:
                p.s("s_cmp_eq_u32", sCnt, s.o.get("qc2at", 5)); p.br("s_cbranch_scc1", "L_qconv2")
                p.label("L_qconv2_back")
            else:
                p.s("s_cmp_eq_u32", sCnt, s.o.get("stat", 2)); p.br("s_cbranch_scc1", "L_str1")
                p.s("s_cmp_eq_u32", sCnt, s.o.get("stat", 2) + 2); p.br("s_cbranch_scc1", "L_dosig0")
                p.label("L_str1_back")
            p.s("s_cmp_lt_u32", sCnt, count)
            p.br("s_cbranch_scc1", name)
        def body():
            s.step(0, s.k2(), f"t{task}e"); s.step(1, s.k2(), f"t{task}o")
        loop(f"L_loop{task}", 7, body)
        s.stamp(6 + 5 * task)
        if task == 1: s.poll_issue(0, sPo)
        if task == 1:
            p.v("v_add_u32", vW, uslot(TO[0]), vTbase); p.v("v_xor_b32", vW1, 8, vW)
            p.v("v_add_u32", vOr[1], 131072, vO); p.v("v_add_u32", vOr[2], 262144, vO)
        s.step(0, [s.treads('V', 0, 0), s.treads('V', 0, 1)], f"t{task}x", need=s.req([("V", 16 * task + 15)] + ([("U", TO[0])] if task else [])))
        s.step(1, s.u2() if task else [[], []], f"t{task}z", qk=False)
        s.stamp(7 + 5 * task)
        if task == 0:
            for f in s.epi_ops(0): f()
        s.stamp(8 + 5 * task)
    def nonce_load(s):
        p = s.p
        p.gen("s_mov_b64 exec, 1", "salu")
        p.gen(f"global_load_dword {vPl4[2]}, {vO}, s[98:99] sc1", "vmem", [vPl4[2]], [vO, S(98, 2)])
        p.gen("s_mov_b64 exec, -1", "salu")
    def signal(s, field, word):
        p = s.p
        p.gen("s_mov_b64 exec, 1", "salu")
        p.v("v_mov_b32", vPoll, sNon)
        p.bstore(vPoll, vO, SRD_DBG, word, field * 128, " sc1", op="buffer_store_dword")
        p.gen("s_mov_b64 exec, -1", "salu")
    def poll_issue(s, field, word):
        p = s.p
        p.gen("s_mov_b64 exec, 1", "salu")
        p.bload(vPl4, vO, SRD_DBG, word, field * 128, " sc1")
        p.gen("s_mov_b64 exec, -1", "salu")
    def poll_test(s):
        p = s.p
        for i in range(4): p.v("v_xor_b32", vPl4[i], sNon, vPl4[i])
        p.v("v_or3_b32", vPl4[0], vPl4[0], vPl4[1], vPl4[2]); p.v("v_or_b32", vPl4[0], vPl4[0], vPl4[3])
        p.v("v_readfirstlane_b32", sT1, vPl4[0])
        p.s("s_cmp_eq_u32", sT1, 0)
    def poll_check(s, field, word):
        p = s.p; tag = f"pl{field}"
        s.poll_test()
        p.br("s_cbranch_scc0", f"L_gspin_{tag}")
        p.label(f"L_gspun_{tag}")
        s.gspins.append((tag, field, word))
    def oloads(s, n, dyn=False):
        p = s.p; r, i, half = n >> 3, (n >> 1) & 3, n & 1
        def ld(ks, t):
            if dyn: p.bload(Of(n, ks, t), vOr[t], SRD_OR, sOc, ks * 1024, " sc1")
            else: p.bload(Of(n, ks, t), vOr[t], SRD_OR, sOH[r][i], half * 2048 + ks * 1024, s.o.get("olflag", " sc1"))
            s.vmlog.append(n)
        return [(lambda ks=ks, t=t: ld(ks, t)) for ks in range(2) for t in range(3)]
    def vmwait(s, tag):
        n = len(s.vmlog) - 1 - max(i for i, x in enumerate(s.vmlog) if x == tag)
        s.p.wait(vm=min(n, 63))
    def u2(s): return [s.treads('W', 0, 0), s.treads('W', 0, 1)]
    def next_oc(s):
        p = s.p
        return [lambda: p.s("s_lshr_b32", sOc, sTm, 1), lambda: p.s("s_add_u32", sOc, sOc, sNc), lambda: p.s("s_and_b32", sOc, sOc, 3),
                lambda: p.s("s_lshl_b32", sT1, sKg, 2), lambda: p.s("s_add_u32", sOc, sOc, sT1), lambda: p.s("s_lshl_b32", sOc, sOc, 13),
                lambda: p.s("s_add_u32", sOc, sOc, sOo[0]), lambda: p.s("s_and_b32", sT1, sTm, 1), lambda: p.s("s_lshl_b32", sT1, sT1, 11),
                lambda: p.s("s_add_u32", sOc, sOc, sT1), lambda: p.s("s_add_u32", sTm, sTm, 1)]
    def op_tile(s, n, nxt, nextu=None, loads=(), pre=(), misc=(), czero=False, fill=()):
        p = s.p
        mf = []
        for ks in range(2):
            for h in range(2):
                for t in range(3):
                    for uu in range(4):
                        D = OPa(4 * h + uu, t)
                        mf.append(lambda ks=ks, h=h, D=D, uu=uu, t=t: p.mfma(D, Abuf(2 * ks + h)[4 * uu:4 * uu + 4], Of(n, ks, t), 0 if (czero and ks == 0) else D))
        if nextu is None:
            mf = mf[:24]
            for sx in (3, 2, 1, 0):
                for t in range(3):
                    for u in (2 * sx, 2 * sx + 1):
                        mf.append(lambda u=u, t=t: p.mfma(OPa(u, t), Abuf(2 + (u >> 2))[4 * (u & 3):4 * (u & 3) + 4], Of(n, 1, t), OPa(u, t)))
        I = s.rd_items(s.treads('W', 1, 0), Abuf(2), "B2", 0, 7) + s.rd_items(s.treads('W', 1, 1), Abuf(3), "B3", 8, 15)
        if nextu is not None: I.append(dict(fn=s.flag_read, cost=4, ds=True, est=16, slot=16, dl=0, grp="FL"))
        I += s.rd_items(nxt[0], Abuf(0), "N0", 24, 31) + s.rd_items(nxt[1], Abuf(1), "N1", 32, 39)
        blast = [it for it in I if it.get("grp") == "B3"][-1]
        if nextu is not None:
            M = s.misc_items([lambda: p.s("s_mov_b32", sNeed, s.req([("U", nextu)])), lambda: p.v("v_add_u32", vW, uslot(nextu), vTbase),
                              lambda: p.v("v_xor_b32", vW1, 8, vW)], 0, 23, "m")
            for m in M[1:]: m["deps"] = [blast]
            I += M
        if misc: I += s.misc_items(list(misc), 0, 20, "oc")
        I += [dict(fn=f, cost=4, est=e, dl=e, seq="ld") for i, (f, e) in enumerate(loads)]
        I += [dict(fn=f, cost=4, est=0, dl=50 + i, seq="fl") for i, f in enumerate(fill)]
        s.hookcost = {24: 5 if nextu is not None else 2}
        hk = [s.rel_hook] + ([lambda: s.check(f"u{n}")] if nextu is not None else [])
        s.sched(mf, I, {0: "C0", 12: "C1", 24: "FL" if nextu is not None else "B3"}, {0: list(pre), 24: hk}, carry={"C0": s.ncarry, "C1": 0})
        s.ncarry = len(nxt[1])
    def tail(s):
        p = s.p
        s.stamp(0, True)
        epi = s.epi_ops(1)
        sp = s.o.get("sp", [0, 4, 4, 4])
        sg = s.o.get("sg", 5); r2at = s.o.get("r2at", 7)
        LD = {j: 2 + j for j in range(6)}; LD.update({r2at + i: 10 + i for i in range(6)})
        est = list(s.est)
        for j, n in enumerate(TO):
            pre = []; loads = []; misc2 = []
            if j >= 4: pre.append(lambda n=n: s.vmwait(n))
            if j == 0: pre += [lambda: p.wait(vm=0), lambda: s.poll_check(0, sPo)]
            if s.o.get("fold"):
                if j == 0: misc2 = epi[:60]
                if j == 1: misc2 = epi[60:]
            elif j == 0: pre = epi + pre
            if j == sg: pre += [lambda: s.vmwait("st"), lambda: s.signal(1, sFo)]
            vm = []
            if j in LD: vm += s.oloads(LD[j])
            if j < len(sp):
                k = sp[j]; st, est = est[:k], est[k:]
                for i, f in enumerate(st): vm.insert(min(len(vm), 2 * i + 1), f)
            loads = [(f, 2 + (44 * i) // max(1, len(vm))) for i, f in enumerate(vm)]
            if j == r2at - 1: loads = loads + [(lambda: (s.poll_issue(1, sPo), s.vmlog.append("pl")), 45)]
            if j == r2at: pre += [lambda: s.vmwait("pl"), lambda: s.poll_check(1, sPo)]
            last = j == len(TO) - 1
            if last:
                pre += [lambda: p.s("s_mul_i32", sT0, sWave, 6144)]
                for gi, sx in enumerate((3, 2, 1)):
                    for t in range(3):
                        def st(sx=sx, t=t):
                            if t == 0:
                                p.s("s_add_u32", sCnt, sKg, sx); p.s("s_and_b32", sCnt, sCnt, 3); p.s("s_mul_i32", sCnt, sCnt, 55296); p.s("s_add_u32", sCnt, sCnt, sT0)
                            p.s("s_add_u32", sT1, sCnt, (sx - 1) * 18432 + t * 2048)
                            for a in range(2): p.bstore(OPa(2 * sx + a, t), vO, SRD_PT, sT1, a * 1024, s.o.get("pflag", " sc1"))
                        loads.append((st, 24 + 6 * gi + 2 * t + 5))
            s.op_tile(n, [[], []] if last else s.u2(), None if last else TO[j + 1], loads, pre, czero=(j == 0), fill=misc2)
            if j in (0, 1, 2, 4, 6, 8, 10, 12): s.stamp(1 + (0, 1, 2, 4, 6, 8, 10, 12).index(j), True)
        s.stamp(14); s.stamp(9, True)
        p.v("v_and_b32", vOut, 15, vLane); p.v("v_lshlrev_b32", vOut, 11, vOut); p.v("v_and_b32", V(135), 48, vLane); p.v("v_add_u32", vOut, vOut, V(135))
        for a in range(2):
            for t in range(3):
                for i in range(4): p.v("v_accvgpr_read_b32", QP1(a, t)[i], OPa(a, t)[i])
        s.stamp(10, True)
        p.wait(vm=0)
        s.stamp(11, True)
        s.signal(2, sFl)
        s.poll_issue(2, sPl); p.wait(vm=0)
        s.stamp(12, True)
        s.poll_check(2, sPl)
        s.stamp(13, True)
        p.s("s_mul_i32", sCnt, sKg, 55296); p.s("s_add_u32", sCnt, sCnt, sT0)
        Pt = lambda src, t, a: V(152 + ((t * 3 + src) * 2 + a) * 4, 4)
        for t in range(3):
            for src in range(3):
                p.s("s_add_u32", sT1, sCnt, src * 18432 + t * 2048)
                for a in range(2): p.bload(Pt(src, t, a), vO, SRD_PT, sT1, a * 1024, s.o.get("plflag", " sc1"))
        for t in range(3):
            p.wait(vm=6 * (2 - t) + t)
            for a in range(2):
                for h in range(2):
                    q = [QP1(a, t)[2 * h:2 * h + 2]] + [Pt(src, t, a)[2 * h:2 * h + 2] for src in range(3)]
                    p.v("v_pk_add_f32", q[0], q[0], q[1]); p.v("v_pk_add_f32", q[2], q[2], q[3]); p.v("v_pk_add_f32", q[0], q[0], q[2])
            q0, q1 = QP1(0, t), QP1(1, t); o = Pt(0, t, 0)
            for q in (q0, q1):
                for h in range(2): p.v("v_cvt_pk_bf16_f32", q[2 * h], q[2 * h], q[2 * h + 1])
            for h in range(2):
                p.v("v_cndmask_b32", o[h], q0[2 * h], q1[2 * h], sOdd)
                p.v("v_cndmask_b32", o[2 + h], q1[2 * h], q0[2 * h], sOdd)
            p.s("s_mov_b32", sT1, t * 32768)
            p.bstore(o, vOut, SRD_OUT, sT1, 0, s.o.get("outflag", " nt"))
    def dma_groups(s, kind, n, regs=None, alt=False):
        p = s.p; G = []
        sA = sT1 if alt else sT0
        if kind in "KV":
            lds = kslot(n) if kind == "K" else vslot(n); srd = SRD_K if kind == "K" else SRD_V
            def grp(q):
                if regs is None: p.s("s_mov_b32", M0, lds + q * 4096)
                p.s("s_add_u32", sA, sKV[n // 16], (n % 16) * TILE + q * 4096)
                for o in range(4):
                    b = 4 * q + o
                    vo = vDk[(b >> 1) & 3] if kind == "K" else vDv[(b >> 1) & 1]
                    if regs is None: p.dma(vo, srd, sA, o * 1024, s.NT)
                    else: p.bload(regs[4 * b:4 * b + 4], vo, srd, sA, o * 1024, s.NT)
            return [(lambda q=q: grp(q)) for q in range(4)], 16
        if kind == "U":
            r, i, half = n >> 3, (n >> 1) & 3, n & 1
            def grp(q):
                if q == 0:
                    p.s("s_add_u32", sWr, sNc, i); p.s("s_and_b32", sWr, sWr, 3); p.s("s_lshl_b32", sA, sKg, 2); p.s("s_add_u32", sWr, sWr, sA)
                    p.s("s_lshl_b32", sWr, sWr, 1); p.s("s_xor_b32", sA, sPar, r); p.s("s_add_u32", sWr, sWr, sA); p.s("s_lshl_b32", sWr, sWr, 17)
                if regs is None: p.s("s_mov_b32", M0, uslot(n) + q * 4096)
                p.s("s_add_u32", sA, sWr, half * 65536 + (32 * (q >> 1) + 8 * (q & 1)) * 1024)
                for o in range(4):
                    if regs is None: p.dma(vDu[o], SRD_WO, sA, o * 1024, s.o.get("wflag", ""))
                    else: p.bload(regs[16 * q + 4 * o:16 * q + 4 * o + 4], vDu[o], SRD_WO, sA, o * 1024, s.o.get("wflag", ""))
            return [(lambda q=q: grp(q)) for q in range(4)], 16
        if kind == "X":
            def grp(q):
                if q == 0:
                    p.s("s_add_u32", sXr, sRot, n % 8); p.s("s_and_b32", sXr, sXr, 7); p.s("s_lshl_b32", sXr, sXr, 7)
                else: p.s("s_add_u32", sXr, sXr, 32768)
                p.s("s_mov_b32", M0, xslot(n) + q * 4096)
                for o in range(4 if q < 4 else 2): p.dma(vDx[o], SRD_X, sXr, o * 1024, s.o.get("xflag", ""))
            return [(lambda q=q: grp(q)) for q in range(5)], 18
        def grp(q):
            if q == 0:
                p.s("s_add_u32", sWr, sRot, n // 2); p.s("s_and_b32", sWr, sWr, 7); p.s("s_lshl_b32", sWr, sWr, 19)
                p.s("s_add_u32", sWr, sWr, sWo[n & 1])
            else: p.s("s_add_u32", sWr, sWr, 131072)
            p.s("s_mov_b32", M0, wslot(n) + q * 4096)
            for o in range(4): p.dma(vDw[o], SRD_WQ, sWr, o * 1024, s.o.get("wflag", ""))
        return [(lambda q=q: grp(q)) for q in range(4)], 16
    def dma_tile(s, kind, n, regs=None):
        if kind in s.o.get("skipk", ""): return 0
        G, c = s.dma_groups(kind, n, regs)
        for g in G: g()
        return c
    def late_setup(s): pass
    def publish(s, n):
        p = s.p
        p.s("s_max_u32", sPm, sPm, n)
        p.v("v_mov_b32", vLf, sPm)
        p.ds_write("ds_write_b32", vLz, vLf, FLAGS - 131072)
    def loader(s):
        p = s.p
        p.s("s_mov_b32", sF, 0); p.s("s_mov_b32", sPm, 0)
        p.v("v_mov_b32", vLz, 131072)
        p.v("v_lshlrev_b32", vO, 4, vLane)
        lag = s.o.get("lag", 1)
        if s.o.get("fake") or s.o.get("indep"): s.publish(1000)
        vm = []
        where = {}; items = 0; pub = 0
        def landed(l):
            pend = [x[1] for x in vm[len(vm) - l:] if x[1] is not None] if l else []
            return min(pend) if pend else items
        for u, (op, kind, n, nf) in enumerate(s.T):
            if s.o.get("fake"): break
            if s.o.get("loadonly") and u >= s.o["loadonly"]: break
            if nf > 0 and not s.o.get("loadonly"):
                p.s("s_cmp_ge_u32", sF, nf)
                p.br("s_cbranch_scc1", f"L_free_{u}")
                p.s("s_mov_b32", sNeed, nf); p.s("s_mov_b32", sPub, items); p.s("s_mov_b32", sPb1, landed(1))
                p.gen(f"s_call_b64 {sRet}, L_poll", "salu", [sRet])
                p.label(f"L_free_{u}")
            if u < 3:
                vm.append((18 if kind == "X" else 16, items)); items += 1
                if u < 2: continue
            elif op == "dma":
                vm.append((s.dma_tile(kind, n), items)); items += 1
            elif op == "stage":
                where[(kind, n)] = len(vm)
                vm.append((s.dma_tile(kind, n, stage_regs(s.reg[(kind, n)])), None))
            else:
                p.wait(vm=min(63, sum(x[0] for x in vm[where[(kind, n)] + 1:])))
                regs = stage_regs(s.reg[(kind, n)])
                p.v("v_add_u32", V(31), {"K": kslot, "V": vslot, "U": uslot}[kind](n), vO)
                for b in range(16): p.ds_write("ds_write_b128", V(31), regs[4 * b:4 * b + 4], b * 1024)
                p.wait(lg=0)
                items += 1
            l = min(lag if u >= s.nP0 else s.o.get("lag0", 2), len(vm))
            if op != "write": p.wait(vm=sum(x[0] for x in vm[len(vm) - l:]))
            if landed(l) > pub:
                pub = landed(l); s.publish(pub)
            if u in (1, 4, 10, 20, 30, 40): s.stamp({1: 1, 4: 2, 10: 3, 20: 4, 30: 5, 40: 6}[u])
            e0 = len(s.T) - 19
            if u >= e0 and u - e0 < 15: s.stamp(u - e0, True)
        done = list(range(items + 1))
        for l in range(lag - 1, -1, -1):
            p.wait(vm=16 * l)
            s.publish(done[len(done) - 1 - l])
        s.stamp(13)
        s.stamp_out()
        p.br("s_branch", "L_k1_end")
        p.label("L_poll")
        q = V(32, 4)
        p.ds_read("ds_read_b128", q, vLz, FLAGS - 131072 + 16); p.wait(lg=0)
        p.v("v_min3_u32", q[0], q[0], q[1], q[2]); p.v("v_readfirstlane_b32", sF, q[0])
        p.s("s_cmp_ge_u32", sF, sNeed); p.br("s_cbranch_scc1", "L_poll_ret")
        p.wait(vm=16)
        s.publish(sPb1)
        p.ds_read("ds_read_b128", q, vLz, FLAGS - 131072 + 16); p.wait(lg=0)
        p.v("v_min3_u32", q[0], q[0], q[1], q[2]); p.v("v_readfirstlane_b32", sF, q[0])
        p.s("s_cmp_ge_u32", sF, sNeed); p.br("s_cbranch_scc1", "L_poll_ret")
        p.wait(vm=0)
        s.publish(sPub)
        p.label("L_poll_spin")
        if s.o.get("slp"): p.gen(f"s_sleep {s.o['slp']}", "salu")
        s.bound()
        p.ds_read("ds_read_b128", q, vLz, FLAGS - 131072 + 16); p.wait(lg=0)
        p.v("v_min3_u32", q[0], q[0], q[1], q[2]); p.v("v_readfirstlane_b32", sF, q[0])
        p.s("s_cmp_ge_u32", sF, sNeed); p.br("s_cbranch_scc0", "L_poll_spin")
        p.label("L_poll_ret")
        p.gen(f"s_setpc_b64 {sRet}", "branch", [], [sRet])
    srd = G1.K1.srd
    def build(s, name):
        p = s.p
        p.raw(f".globl {name}"); p.raw(".p2align 8"); p.raw(f".type {name},@function"); p.label(name)
        p.s("s_cmp_ge_u32", S(2), 256); p.br("s_cbranch_scc1", "L_k1_end")
        if s.o.get("stamps"): p.gen("s_memtime s[100:101]", "smem", [S(100, 2)])
        p.smem("s_load_dwordx16", S(64, 16), S(0, 2), 0)
        p.smem("s_load_dwordx8", S(80, 8), S(0, 2), 64)
        p.smem("s_load_dwordx2", S(88, 2), S(0, 2), 96)
        p.v("v_lshrrev_b32", V(1), 6, V(0))
        p.v("v_readfirstlane_b32", sWave, V(1))
        p.gen("s_getpc_b64 s[90:91]", "salu", [S(90, 2)])
        p.label("L_pc")
        p.gen(f"s_sub_u32 s90, s90, L_pc-{name}", "salu", [S(90)], [S(90)]); p.s("s_subb_u32", S(91), S(91), 0)
        p.s("s_lshr_b32", S(6), S(2), 3); p.s("s_lshl_b32", S(6), S(6), 10)
        p.v("v_lshlrev_b32", V(140), 4, V(0)); p.v("v_lshl_add_u32", V(140), S(6), 2, V(140))
        p.gen(f"v_min_u32 v140, L_k1_end-{name}-16, v140", "valu", [V(140)], [V(140)])
        p.gen("global_load_dwordx4 v[136:139], v140, s[90:91]", "vmem", [V(136, 4)], [V(140), S(90, 2)])
        p.v("v_and_b32", vLane, 63, V(0))
        p.v("v_mov_b32", vZ, 131072)
        for i in range(4): p.v("v_mov_b32", V(252 + i), 0)
        p.ds_write("ds_write_b128", vZ, V(252, 4), FLAGS - 131072); p.ds_write("ds_write_b128", vZ, V(252, 4), FLAGS - 131072 + 16)
        p.s("s_mov_b32", sSpin, 0)
        sb = S(4); sh = S(5); sP = S(8)
        if s.o.get("mapz"):
            p.s("s_bfe_u32", sP, S(2), 0x10002)
            p.s("s_bfe_u32", sb, S(2), 0x10001); p.s("s_lshl_b32", sb, sb, 2); p.s("s_bfe_u32", S(9), S(2), 0x20003); p.s("s_add_u32", sb, sb, S(9))
            p.s("s_and_b32", sh, S(2), 1); p.s("s_lshl_b32", sh, sh, 3); p.s("s_lshr_b32", S(10), S(2), 5); p.s("s_add_u32", sh, sh, S(10))
        else:
            p.s("s_bfe_u32", sP, S(2), 0x10003)
            p.s("s_bfe_u32", sb, S(2), 0x10002); p.s("s_lshl_b32", sb, sb, 2); p.s("s_bfe_u32", S(9), S(2), 0x20004); p.s("s_add_u32", sb, sb, S(9))
            p.s("s_and_b32", sh, S(2), 3); p.s("s_lshl_b32", sh, sh, 2); p.s("s_lshr_b32", S(10), S(2), 6); p.s("s_add_u32", sh, sh, S(10))
            p.s("s_lshl_b32", S(10), S(10), 1)
        p.s("s_lshl_b32", sh, sh, 1)
        if s.o.get("norot"): p.s("s_mov_b32", sRot, 0)
        elif s.o.get("rot") == "b": p.s("s_lshl_b32", sRot, S(9), 1)
        elif s.o.get("rot") == "h": p.s("s_mov_b32", sRot, S(10))
        else:
            p.s("s_lshl_b32", sRot, S(9), 1); p.s("s_lshr_b32", S(10), S(10), 1); p.s("s_add_u32", sRot, sRot, S(10))
        if s.o.get("noswap"): p.s("s_mov_b32", S(11), 0)
        else: p.s("s_and_b32", S(11), S(9), 1)
        for tk in range(2):
            if tk: p.s("s_xor_b32", S(11), S(11), 1)
            p.s("s_lshl_b32", sKV[tk], S(11), 18); p.s("s_lshl_b32", sWo[tk], S(11), 8); p.s("s_lshl_b32", sOo[tk], S(11), 12)
        g = V(13); c16 = V(14); t1 = V(15); t2 = V(16); ph = V(17); t3 = V(18); x4 = V(19)
        p.v("v_lshrrev_b32", g, 4, vLane); p.v("v_and_b32", c16, 15, vLane)
        p.v("v_mov_b32", t3, 0x78)
        p.v("v_and_b32", x4, 3, vLane); p.v("v_bfe_u32", t2, vLane, 2, 2)
        p.v("v_lshlrev_b32", t1, 6, g)
        p.v("v_lshl_add_u32", ph, t2, 13, t1); p.v("v_lshl_add_u32", vDw[0], x4, 4, ph)
        p.v("v_xor_b32", vDw[2], 16, vDw[0])
        p.v("v_add_u32", vDw[3], 3 * (32768 - 1024), vDw[2]); p.v("v_add_u32", vDw[2], 2 * (32768 - 1024), vDw[2])
        p.v("v_add_u32", vDw[1], 32768 - 1024, vDw[0])
        p.v("v_lshl_add_u32", t1, t2, 8, t1)
        for k in range(4):
            p.v("v_xor_b32", ph, PHI[k], x4); p.v("v_lshl_add_u32", vDk[k], ph, 4, t1)
        for k in range(2):
            p.v("v_xor_b32", ph, 2 * k, x4); p.v("v_lshl_add_u32", vDv[k], ph, 4, t1)
        p.v("v_bfe_u32", t2, vLane, 2, 3); p.v("v_lshrrev_b32", t1, 5, vLane); p.v("v_lshlrev_b32", t1, 6, t1)
        p.v("v_lshl_add_u32", t2, t2, 10, t1)
        for k in range(2):
            p.v("v_bfe_u32", t1, vLane, 4, 1); p.v("v_add_u32", t1, 2 * k, t1); p.v("v_lshlrev_b32", t1, 1, t1)
            p.v("v_lshrrev_b32", t1, t1, t3); p.v("v_and_b32", t1, 3, t1)
            p.v("v_xor_b32", t1, t1, x4); p.v("v_lshl_add_u32", vDx[k], t1, 4, t2)
        p.v("v_add_u32", vDx[2], 2 * 7168, vDx[0]); p.v("v_add_u32", vDx[3], 3 * 7168, vDx[1]); p.v("v_add_u32", vDx[1], 7168, vDx[1])
        p.wait(lg=0)
        ptr = lambda i: S(64 + 2 * i, 2)
        so = S(6); so2 = S(7)
        p.s("s_cmp_eq_u32", sP, 1)
        for i in range(5): p.s("s_cselect_b64", ptr(i), ptr(5 + i), ptr(i))
        p.s("s_mul_i32", so, sb, 147456)
        s.srd(SRD_X, ptr(0), so, 147456)
        p.s("s_lshl_b32", so, sh, 8); p.s("s_sub_u32", so2, 4194304, so)
        s.srd(SRD_WQ, ptr(3), so, so2)
        p.s("s_cmp_eq_u32", sWave, 3); p.br("s_cbranch_scc0", "L_noearly")
        for _, k, n, _ in s.T[:3]: s.dma_tile(k, n)
        p.label("L_noearly")
        p.s("s_lshl_b32", so, sb, 5); p.s("s_add_u32", so, so, sh); p.s("s_lshl_b32", so, so, 18)
        s.srd(SRD_K, ptr(1), so, 524288); s.srd(SRD_V, ptr(2), so, 524288)
        p.s("s_lshl_b32", so, sP, 3); p.s("s_add_u32", so, so, sb)
        p.s("s_mul_i32", so, so, 9); p.s("s_min_u32", so2, sWave, 2); p.s("s_mul_i32", so2, so2, 3); p.s("s_add_u32", so, so, so2)
        p.s("s_lshl_b32", so, so, 17); p.s("s_lshl_b32", so2, sh, 12); p.s("s_add_u32", so, so, so2)
        p.s("s_sub_u32", so2, 18874368, so)
        s.srd(SRD_WS, ptr(12), so, so2)
        def stamp_init():
            if s.o.get("stamps"):
                p.s("s_lshl_b32", so, S(2), 2); p.s("s_add_u32", so, so, sWave); p.s("s_lshl_b32", so, so, 6)
                p.s("s_add_u32", so, so, 64 << 20)
                s.srd(S(12, 4), ptr(12), so, 64)
                if s.o.get("dbgout"):
                    p.s("s_lshl_b32", so, S(2), 2); p.s("s_add_u32", so, so, sWave); p.s("s_cmp_eq_u32", so, s.o["dbgout"] * 4)
                    p.s("s_cselect_b32", so2, 64, 0)
                    s.srd(S(12, 4), ptr(11), 0, so2)
                for i in range(16): p.s("s_mov_b64", S(64 + 2 * i, 2), 0)
            s.stamp(0)
        s.stamp_init = stamp_init; s.ptr = ptr

        p.s("s_lshl_b32", so, sP, 3); p.s("s_add_u32", S(96), so, sb)
        p.s("s_lshl_b32", S(97), sP, 10); p.s("s_mul_i32", so, sb, 144 * 2048); p.s("s_add_u32", S(97), S(97), so)
        p.s("s_lshr_b32", sPar, sOo[0], 12)
        p.s("s_lshr_b32", sKg, sh, 3); p.s("s_bfe_u32", sNc, sh, 0x20001); p.s("s_mov_b32", sPB, S(96))
        p.barrier()
        p.s("s_cmp_eq_u32", sWave, 3); p.br("s_cbranch_scc1", "L_loader")
        p.s("s_mov_b64", S(98, 2), ptr(11))
        p.s("s_or_b32", so, S(2), sWave); p.s("s_cmp_eq_u32", so, 0); p.br("s_cbranch_scc0", "L_nononce")
        p.gen("s_memrealtime s[6:7]", "smem", [S(6, 2)]); p.wait(lg=0)
        p.s("s_or_b32", sNon, S(6), 1)
        p.gen("s_mov_b64 exec, 1", "salu")
        p.v("v_mov_b32", V(130), sNon); p.v("v_mov_b32", V(132), 0)
        p.gen("global_store_dword v132, v130, s[98:99] sc1", "vmem", [], [V(130), V(132), S(98, 2)])
        p.gen("s_mov_b64 exec, -1", "salu")
        p.label("L_nononce")
        p.s("s_mul_i32", so, sPB, 9); p.s("s_mul_i32", so2, sWave, 3); p.s("s_add_u32", so, so, so2); p.s("s_lshl_b32", so, so, 17)
        s.srd(SRD_OR, ptr(12), so, 3 * 131072)
        p.s("s_lshl_b32", so, sPB, 2); p.s("s_add_u32", so, so, sNc); p.s("s_mul_i32", sPl, so, 384); p.s("s_lshl_b32", so2, sWave, 4); p.s("s_add_u32", sPl, sPl, so2)
        p.s("s_lshl_b32", so2, sKg, 2); p.s("s_add_u32", sFl, sPl, so2)
        p.s("s_mul_i32", so, so, 4 * 55296); p.s("s_add_u32", so, so, PARTOFF)
        s.srd(SRD_PT, ptr(12), so, 4 * 55296)
        p.s("s_lshl_b32", so, sPB, 2); p.s("s_add_u32", so, so, sKg); p.s("s_mul_i32", sPo, so, 384); p.s("s_lshl_b32", so2, sWave, 4); p.s("s_add_u32", sPo, sPo, so2)
        p.s("s_lshl_b32", so2, sNc, 2); p.s("s_add_u32", sFo, sPo, so2)
        p.s("s_mul_i32", so, sWave, 48 * 2048); p.s("s_add_u32", so, so, S(97)); p.s("s_lshl_b32", so2, sNc, 8); p.s("s_add_u32", so, so, so2)
        p.s("s_lshl_b32", so2, sKg, 6); p.s("s_add_u32", so, so, so2); p.s("s_sub_u32", so2, 2359296, so)
        s.srd(SRD_OUT, ptr(10), so, so2)
        s.srd(SRD_DBG, ptr(12), FLAGOFF, 64 * 384)
        for i in range(4):
            p.s("s_add_u32", so, sNc, i); p.s("s_and_b32", so, so, 3); p.s("s_lshl_b32", so2, sKg, 2); p.s("s_add_u32", so, so, so2); p.s("s_lshl_b32", so, so, 13)
            p.s("s_add_u32", sOH[0][i], so, sOo[0]); p.s("s_add_u32", sOH[1][i], so, sOo[1])
        stamp_init()
        if s.o.get("loadonly") and not s.o.get("indep"): p.br("s_branch", "L_k1_end")
        p.v("v_and_b32", t1, 1, g); p.v("v_xor_b32", t1, t1, c16); p.v("v_lshlrev_b32", t1, 4, t1)
        p.v("v_and_b32", t2, 1, c16); p.v("v_lshl_add_u32", t1, t2, 3, t1); p.v("v_lshl_add_u32", vTbase, g, 11, t1)
        p.v("v_and_b32", t1, 1, g); p.v("v_cmp_eq_u32", sOdd, 1, t1)
        p.v("v_lshrrev_b32", t1, 2, c16); p.v("v_lshlrev_b32", t2, 1, t1); p.v("v_lshrrev_b32", ph, t2, t3); p.v("v_and_b32", ph, 3, ph)
        p.v("v_xor_b32", ph, g, ph)
        p.v("v_lshlrev_b32", t1, 11, t1); p.v("v_and_b32", t2, 3, c16); p.v("v_lshl_add_u32", t1, t2, 6, t1)
        p.v("v_lshl_add_u32", vKbase, ph, 4, t1)
        p.v("v_lshrrev_b32", t1, 3, c16); p.v("v_lshlrev_b32", t1, 10, t1); p.v("v_and_b32", t2, 7, c16); p.v("v_lshl_add_u32", t1, t2, 6, t1)
        p.v("v_lshl_add_u32", vXbase, ph, 4, t1)
        p.s("s_mul_i32", S(6), sWave, 6144); p.v("v_add_u32", vXbase, S(6), vXbase)
        p.v("v_lshlrev_b32", t1, 11, g); p.v("v_lshrrev_b32", t2, 2, c16); p.v("v_lshl_add_u32", t1, t2, 6, t1)
        p.v("v_and_b32", t2, 1, g); p.v("v_lshl_add_u32", t1, t2, 5, t1); p.v("v_and_b32", t2, 3, c16); p.v("v_lshl_add_u32", vVbase, t2, 3, t1)
        p.v("v_lshlrev_b32", vO, 4, vLane)
        p.s("s_lshl_b32", S(6), sWave, 2); p.s("s_add_u32", S(6), S(6), FLAGS + 16); p.v("v_mov_b32", vFa, S(6)); p.v("v_mov_b32", vEp, 1)
        p.s("s_mov_b32", sK, kslot(0)); p.s("s_mov_b32", sV, vslot(0))
        p.v("v_add_u32", vK, sK, vKbase); p.v("v_add_u32", vV, sV, vVbase); p.v("v_xor_b32", vV1, 32, vV)
        p.v("v_add_u32", vW, wslot(0), vTbase); p.v("v_xor_b32", vW1, 8, vW); p.v("v_add_u32", vXa, xslot(0), vXbase)
        p.s("s_mov_b32", sThr, f2u(float("inf") if s.o.get("nothr") else THR)); p.s("s_mov_b32", sC[0], f2u(CSCALE)); p.s("s_mov_b32", sC[1], f2u(CSCALE))
        p.v("v_mov_b32", V(13), 0x3F803F80)
        for i in range(4): p.v("v_accvgpr_write_b32", ONES[i], V(13))
        for f in s.zero_fillers(): f()
        s.stamp(1)
        p.s("s_mov_b32", sNeed, s.req([("W", 0), ("X", 0)]))
        s.flag_read(); p.wait(lg=0); s.check("init")
        s.stamp(2)
        s.prime(s.treads('WX', 0, 0), s.treads('WX', 0, 1)); s.ncarry = 8
        for n in range(16):
            p.cmt(f"---- P0 tile {n}")
            if n < 15:
                a = 'W' if n % 2 == 0 else 'WX'
                nr = [s.treads(a, 0, 0), s.treads(a, 0, 1)]
                need = s.req([("W", n + 1), ("X", (n + 1) // 2)])
            else:
                nr = s.k2(); need = s.req([("K", 0)])
            s.qp_tile(n, nr, need, s.qconv1_fillers() if n == 15 else ())
        p.wait(vm=0)
        s.stamp(3)
        s.task(0)
        p.s("s_mov_b32", sNeed, s.req([("K", 16)]))
        s.flag_read(); p.wait(lg=0); s.check("bnd")
        s.prime(*s.k2()); s.ncarry = 4
        s.task(1)
        s.tail()
        s.stamp(13); s.stamp(14, True)
        s.stamp_out()
        p.br("s_branch", "L_k1_end")
        p.label("L_qconv2")
        s.qconv2()
        p.br("s_branch", "L_qconv2_back")
        p.label("L_str1")
        s.store_r1(); s.nonce_load()
        p.br("s_branch", "L_str1_back")
        p.label("L_getnonce")
        s.bound(); s.nonce_load()
        p.label("L_dosig0")
        p.wait(vm=0)
        p.v("v_readfirstlane_b32", sNon, vPl4[2])
        p.s("s_cmp_eq_u32", sNon, 0); p.br("s_cbranch_scc1", "L_getnonce")
        s.signal(0, sFo)
        p.br("s_branch", "L_str1_back")
        for tag in s.spins:
            p.label(f"L_spin_{tag}")
            if s.o.get("slp"): p.gen(f"s_sleep {s.o['slp']}", "salu")
            s.bound()
            s.flag_read(); p.wait(lg=0)
            p.v("v_readfirstlane_b32", sF, vFl)
            p.s("s_cmp_ge_u32", sF, sNeed)
            p.br("s_cbranch_scc0", f"L_spin_{tag}")
            p.br("s_branch", f"L_spun_{tag}")
        for tag, nx in s.stubs:
            p.label(f"L_stub_{tag}")
            p.gen(f"s_call_b64 {sRet}, L_rare{nx}", "salu", [sRet])
            p.br("s_branch", f"L_back_{tag}")
        for nx in range(2):
            p.label(f"L_rare{nx}")
            p.nop(10)
            s.rescale(nx, False)
            p.nop(4)
            p.gen(f"s_setpc_b64 {sRet}", "branch", [], [sRet])
        for tag, field, word in s.gspins:
            p.label(f"L_gspin_{tag}")
            s.bound()
            p.gen("s_sleep 1", "salu")
            s.poll_issue(field, word); p.wait(vm=0)
            s.poll_test()
            p.br("s_cbranch_scc0", f"L_gspin_{tag}")
            p.br("s_branch", f"L_gspun_{tag}")
        p.label("L_loader")
        p.s("s_lshl_b32", so, sNc, 8); p.s("s_sub_u32", so2, 4194304, so)
        s.srd(SRD_WO, ptr(4), so, so2)
        p.v("v_bfe_u32", t2, vLane, 2, 2); p.v("v_add_u32", t1, sKg, g); p.v("v_and_b32", t1, 3, t1); p.v("v_lshlrev_b32", t1, 6, t1)
        p.v("v_lshl_add_u32", t1, t2, 10, t1); p.v("v_lshl_add_u32", vDu[0], x4, 4, t1)
        p.v("v_xor_b32", vDu[2], 16, vDu[0])
        p.v("v_add_u32", vDu[1], 15 * 1024, vDu[0]); p.v("v_add_u32", vDu[3], 17 * 1024, vDu[2]); p.v("v_add_u32", vDu[2], 2 * 1024, vDu[2])
        if s.o.get("lind"):
            for r in vDk + vDv: p.v("v_lshlrev_b32", r, 4, vLane)
            p.v("v_and_b32", t1, 15, vLane); p.v("v_lshlrev_b32", t1, 4, t1); p.v("v_lshl_add_u32", vDw[0], g, 13, t1)
            for o in range(1, 4): p.v("v_add_u32", vDw[o], o * (32768 - 1024), vDw[0])
            p.v("v_and_b32", t1, 7, vLane); p.v("v_lshlrev_b32", t1, 4, t1); p.v("v_lshrrev_b32", t2, 3, vLane); p.v("v_lshl_add_u32", vDx[0], t2, 10, t1)
            for o in range(1, 4): p.v("v_add_u32", vDx[o], o * 7168, vDx[0])
        stamp_init()
        s.loader()
        p.label("L_k1_end")
        p.gen("s_endpgm", "branch")
        return p
vZ = V(251)

def one(fn, **o):
    k = K1(o); p = k.build(NAME + "_kernel")
    print(fn, "instrs", p.count(), "auto nops", p.nops, "over", k.over, file=sys.stderr)
    open(fn, "w").write(G1.assemble(["; @launch grid=(256,1,1) block=(256,1,1) lds=163840"], [p], [kdesc(NAME + "_kernel")]))
def full(fn, o1=None, o2=None):
    k = K1(o1); p1 = k.build("attn_kernel"); p2 = G1.build_k2("oproj_kernel", o2)
    t = G1.assemble(["; @launch kernel=attn_kernel grid=(256,1,1) block=(256,1,1) lds=163840",
                  "; @launch kernel=oproj_kernel grid=(256,1,1) block=(256,1,1) lds=147456"], [p1, p2],
                 [kdesc("attn_kernel"), kdesc("oproj_kernel", vgpr=256, accum=256)])
    open(fn, "w").write(t)
if __name__ == "__main__":
    R = dict(norot=True, slp=2, fold=True)
    one("y_a.s", **R)
    one("y_both.s", stamps=True, both=True, **R)
    one("y_af.s", stamps=True, rt=True, fine=True, **R)
```

```python
import sys, math, struct
from asmlib import *
import gen as G1
NAME = G1.NAME
f2u = G1.f2u
TILE = 16384; XT = 18432
NKS, NVS = 4, 3
KRING, VRING = 0, 4 * TILE
X0RING = 6 * TILE
XB, WB = 7 * TILE, 7 * TILE + XT
FLAGS = 150 * 1024
PHI = [0, 2, 3, 1]
def kslot(n): return KRING + (n % NKS) * TILE
def vslot(n): return VRING + (n % NVS) * TILE
def wslot(n): return WB if n >= 8 else [2, 5, 3][(n + 1) % 3] * TILE
def xslot(e): return XB if e >= 8 else X0RING + (e % 3) * XT
TO = [0, 1, 8, 9, 2, 3, 4, 5, 6, 7, 10, 11, 12, 13, 14, 15]
USL = [("W", 15), ("X", 15), ("K", 28), ("K", 29), ("K", 30), ("V", 29), ("K", 31), ("V", 30), ("V", 31)]
def uslot(n):
    k, m = USL[TO.index(n) % 9]
    return {"W": wslot, "X": xslot, "K": kslot, "V": vslot}[k](m)
vLane = V(0); vKbase = V(1); vTbase = V(2); vK = V(3); vV = V(4); vW = V(5)
vW1 = V(11); vV1 = V(6); vXa = V(7); vVbase = V(8); vO = V(9); vMx = V(10); vXbase = V(129)
vFl = V(248); vLf = V(30); vLz = V(40); vFa = V(249); vEp = V(250)
vDx = [V(20 + i) for i in range(4)]; vDk = [V(24 + i) for i in range(4)]; vDv = [V(28), V(29)]; vDw = [V(36 + i) for i in range(4)]
def stage_regs(i): return V(64 + 64 * i, 64) if i < 3 else A(64 * (i - 3), 64)
TMP = [V(12 + i) for i in range(8)]
TQ = [V(12, 4), V(16, 4), V(252, 4)]
def negm(t): return V(20 + 4 * t, 4)
SB = [32, 80]
def Sq(b, al, t): return V(SB[b] + (al * 3 + t) * 4, 4)
def Pq(ks, t): return V(128 + (ks * 3 + t) * 4, 4)
def Oq(u, t): return V(152 + (u * 3 + t) * 4, 4)
def QP1(u, t): return V(32 + (u * 3 + t) * 4, 4)
def QP2(u, t): return A((u * 3 + t) * 4, 4)
QBASE = [96]
def Qf(t, s): return A(QBASE[0] + (t * 4 + s) * 4, 4)
def Qf2(t, s): return A((s * 3 + t) * 4, 4)
QSEL = [0]
def Qcur(t, s): return (Qf, Qf2)[QSEL[0]](t, s)
def Abuf(par): return A(144 + 16 * (par & 3), 16)
def Xf(ks, t): return A(208 + (ks * 3 + t) * 4, 4)
def Lq(t): return A(232 + 4 * t, 4)
ONES = A(244, 4)
sWave = S(3)
SRD_X = S(16, 4); SRD_K = S(24, 4); SRD_V = S(28, 4); SRD_WQ = S(40, 4); SRD_WS = S(48, 4)
sK = S(52); sV = S(53); sNeed = S(54); sCnt = S(55); sF = S(56); sThr = S(57)
sC = S(58, 2); sRet = S(60, 2); sT0 = S(62); sT1 = S(63); sRot = S(20); sWr = S(21); sXr = S(22); sPub = S(23); sSpin = S(32); sKV = [S(33), S(34)]; sWo = [S(35), S(36)]; sOo = [S(37), S(38)]; sOdd = S(46, 2)
SRD_OR = S(16, 4); SRD_PT = S(24, 4); SRD_OUT = S(28, 4); SRD_DBG = S(40, 4); SRD_WO = S(48, 4)
sOH = [[S(20), S(21), S(22), S(23)], [S(33), S(34), S(35), S(36)]]
sKg = S(4); sNc = S(5); sPar = S(8); sPB = S(9); sPo = S(10); sPl = S(11)
vDu = [V(44 + i) for i in range(4)]
vOr = [V(9), V(7), V(19)]; vPl4 = V(252, 4); vPoll = V(252); vOne = V(253); vOut = V(134)
FLAGOFF = 2 * 18874368; sNon = S(39); sFo = S(44); sFl = S(45); sPb1 = S(45); sPm = S(44); sOc = S(96); sTm = S(97)
OFB = {8: 32, 9: 56, 2: 80, 3: 104, 4: 128, 5: 152, 6: 176, 7: 200, 10: 224, 11: 32, 12: 56, 13: 80, 14: 104, 15: 128}
def Of(n, ks, t):
    if n < 2: return A(48 + (n * 6 + ks * 3 + t) * 4, 4)
    return V(OFB[n] + (ks * 3 + t) * 4, 4)
def OPa(u, t):
    i = u * 3 + t
    return A(4 * i, 4) if i < 12 else A(96 + 4 * (i - 12), 4)
PARTOFF = 18874368
CSCALE = G1.CSCALE; THR = 16.0

PLANS = {}
class K1:
    def __init__(s, opts=None):
        s.p = Prog(); s.par = 0; s.over = []; s.vmlog = []; s.gspins = []; s.hookcost = {}; s.stubs = []; s.spins = []; s.o = opts or {}
        s.NT = s.o.get("kvflag", " nt")
        if s.o.get("nomfma"): s.p.mfma = lambda *a, **k: None
        if s.o.get("nods"): s.p.ds_read = lambda *a, **k: None
        if s.o.get("lin"):
            od = s.p.ds_read
            s.p.ds_read = lambda op, d, addr, off: od(op, d, vO if op != "ds_read_b32" else addr, off)
        if s.o.get("noexp"):
            ov = s.p.v
            def vv(op, *a, **k):
                if op in ("v_exp_f32", "v_cvt_pk_bf16_f32", "v_max3_f32"): return
                ov(op, *a, **k)
            s.p.v = vv
        s.stream()
    def stream(s):
        rel = {}; ep = 0
        for e in range(8):
            ep += 1; rel[("W", e)] = ep; rel[("X", e)] = ep
        for J in range(32):
            ep += 1; rel[("V", J)] = ep
            if J % 16 < 15: rel[("K", J + 1)] = ep
            if J % 16 == 0: rel[("K", J)] = ep
            if J < 16 and J % 2 == 1:
                ep += 1; rel[("W", 8 + J // 2)] = ep; rel[("X", 8 + J // 2)] = ep
        for n in TO:
            ep += 1; rel[("U", n)] = ep
        def need(k, n):
            if k == "U":
                j = TO.index(n)
                return rel[("U", TO[j - 9])] if j >= 9 else rel[USL[j]]
            if k == "W": return rel[("X", 7)] if n == 8 else (rel[("W", n - 1)] if n > 8 else (rel[("W", n - 3)] if n >= 3 else 0))
            if k == "X": return rel[("X", 7)] if n == 8 else (rel[("X", n - 1)] if n > 8 else (rel[("X", n - 3)] if n >= 3 else 0))
            if k == "K": return {0: 0, 1: 0, 2: rel[("W", 5)], 3: rel[("W", 7)]}[n] if n < 4 else rel[("K", n - 4)]
            return {0: 0, 1: rel[("W", 6)], 2: rel[("X", 6)]}[n] if n < 3 else rel[("V", n - 3)]
        order = []
        kv0 = s.o.get("kvpos", {3: ("K", 0), 5: ("K", 1), 6: ("V", 0)})
        for e in range(8):
            order += [("X", e), ("W", e)]
            if e in kv0: order.append(kv0[e])
        s.nP0 = len(order); s.R = len(order)
        for i in range(7):
            order += [("K", 2 * i + 2), ("V", 2 * i + 1), ("K", 2 * i + 3), ("V", 2 * i + 2), ("X", 8 + i), ("W", 8 + i)]
        order += [("V", 15), ("X", 15), ("W", 15), ("K", 16), ("K", 17), ("V", 16)]
        order += [("U", n) for n in TO[:s.o.get("ue", 2)]]
        s.R1 = len(order)
        for n in range(18, 32): order += [("K", n), ("V", n - 1)]
        order.append(("V", 31))
        order += [("U", n) for n in TO[s.o.get("ue", 2):]]
        s.T = [("dma", k, n, need(k, n)) for k, n in order]
        s.reg = {}; s.pairs = set()
        s.pos = {t: i for i, t in enumerate(order)}
    def req(s, tiles): return 1 + max(s.pos[t] for t in tiles)
    def stamp(s, i, fine=False):
        if s.o.get("both"):
            M = {0: 0, 5: 1, 6: 2, 10: 3, 11: 4, 12: 5, 13: 6}
            if i in M and not fine:
                s.p.gen(f"s_memrealtime {S(64 + 2 * M[i], 2)}", "smem", [S(64 + 2 * M[i], 2)])
                s.p.gen(f"s_memtime {S(64 + 2 * (8 + M[i]), 2)}", "smem", [S(64 + 2 * (8 + M[i]), 2)])
            return
        if s.o.get("iter"):
            if i in (6, 11) and not fine: s.p.gen(f"s_memrealtime {S(64 + 14 + (16 if i == 11 else 0), 2)}", "smem")
            return
        if s.o.get("stamps") and bool(s.o.get("fine")) == fine: s.p.gen(f"s_memtime {S(64 + 2 * i, 2)}", "smem", [S(64 + 2 * i, 2)])
    def stamp_out(s):
        if not s.o.get("stamps"): return
        p = s.p
        p.wait(lg=0)
        if s.o.get("abs"): p.s("s_mov_b32", S(64 + 30), S(64))
        elif s.o.get("entry"):
            p.s("s_sub_u32", S(100), S(64), S(100)); p.s("s_add_u32", S(64 + 30), S(100), S(64))
        elif not s.o.get("iter"): p.s("s_add_u32", S(64 + 30), sSpin, S(64))
        p.v("v_mov_b32", V(1), 0)
        for i in range(16):
            p.v("v_mov_b32", V(2), S(64 + 2 * i))
            if s.o.get("dbgout"):
                if i == 0: continue
                p.v("v_subrev_u32", V(2), S(64), V(2))
            p.bstore(V(2), V(1), S(12, 4), 0, 4 * i, op="buffer_store_dword")
    def flag_read(s): s.p.ds_read("ds_read_b32", vFl, vFa, 0) if False else s.p.ds_read("ds_read_b32", vFl, vZ, FLAGS - 131072)
    def release(s):
        p = s.p
        p.ds_write("ds_write_b32", vFa, vEp, 0)
        p.v("v_add_u32", vEp, 1, vEp)
    def check(s, tag):
        p = s.p
        if s.o.get("nochk"): return
        p.v("v_readfirstlane_b32", sF, vFl)
        p.s("s_cmp_ge_u32", sF, sNeed)
        p.br("s_cbranch_scc0", f"L_spin_{tag}")
        p.label(f"L_spun_{tag}")
        s.spins.append(tag)
    def bound(s):
        p = s.p
        p.s("s_add_u32", sSpin, sSpin, 1); p.s("s_cmp_gt_u32", sSpin, 1 << 22); p.br("s_cbranch_scc1", "L_k1_end")
    def kreads(s, al):
        ks, a = al >> 1, al & 1
        return [lambda buf, sx=sx: s.p.ds_read("ds_read_b128", buf[4 * sx:4 * sx + 4], vK, (8 * ks + a) * 1024 + 256 * sx) for sx in range(4)]
    def treads(s, addr, ks, half):
        out = []
        for uu in range(4):
            u = 4 * half + uu; sp, ap = u >> 1, u & 1
            for a in range(2):
                if addr == 'V':
                    out.append(lambda buf, uu=uu, a=a, sp=sp, ap=ap: s.p.ds_read("ds_read_b64_tr_b16", buf[4 * uu + 2 * a:4 * uu + 2 * a + 2],
                                                                         (vV, vV1)[ap], (8 * ks + a) * 1024 + 256 * sp))
                else:
                    out.append(lambda buf, uu=uu, a=a, sp=sp, ap=ap: s.p.ds_read("ds_read_b64_tr_b16", buf[4 * uu + 2 * a:4 * uu + 2 * a + 2],
                                                                         (vW, vW1)[ap], (8 * ks + a) * 1024 + 256 * sp))
        if addr == 'WX' and half == 0:
            for t in range(3):
                out.append(lambda buf, t=t: s.p.ds_read("ds_read_b128", Xf(ks, t), vXa, t * 2048 + ks * 512))
        return out
    def kbatch(s, al, sb, czero=False):
        mf = []
        for sx in range(4):
            for t in range(3):
                D = Sq(sb, al, t)
                C = (0 if czero else negm(t)) if sx == 0 else D
                mf.append(lambda buf, D=D, C=C, sx=sx, t=t: s.p.mfma(D, buf[4 * sx:4 * sx + 4], Qcur(t, sx), C))
        return dict(reads=s.kreads(al), mf=mf)
    def tbatch(s, addr, ks, half, acc, bop, withl=False, czero=False):
        mf = []
        for t in range(3):
            for uu in range(4):
                D = acc(4 * half + uu, t)
                mf.append(lambda buf, D=D, uu=uu, t=t: s.p.mfma(D, buf[4 * uu:4 * uu + 4], bop(ks, t), 0 if czero else D))
            if withl: mf.append(lambda buf, t=t: s.p.mfma(Lq(t), ONES, bop(ks, t), Lq(t)))
        return dict(reads=s.treads(addr, ks, half), mf=mf)
    def prime(s, r0, r1):
        for f in r0: f(Abuf(0))
        for f in r1: f(Abuf(1))
    def plan(s, nslot, items, waits):
        at = {}
        pre = [[] for _ in range(nslot + 1)]; post = [[] for _ in range(nslot)]
        ds = [it for it in items if it["ds"]]; nd = [it for it in items if not it["ds"]]
        fill = [0] * (nslot + 1)
        dsi = 0
        def ready(it, slot):
            if it["id"] in at or it["est"] > slot: return False
            for d in it["deps"]:
                if at.get(d["id"], 10 ** 9) >= slot: return False
            pv = it.get("prev")
            return pv is None or pv["id"] in at
        for slot in range(nslot):
            for it in nd:
                if it["id"] not in at and it.get("hard") is not None and it["hard"] <= slot:
                    chain = [it]
                    while chain[-1].get("prev") is not None and chain[-1]["prev"]["id"] not in at: chain.append(chain[-1]["prev"])
                    for c in reversed(chain):
                        for d in c["deps"]:
                            if d["id"] not in at:
                                if d["ds"]: return None
                                at[d["id"]] = slot - 1; pre[slot].append(d); fill[slot] += d["cost"]
                        at[c["id"]] = slot - 1; pre[slot].append(c); fill[slot] += c["cost"]
            if slot in waits:
                if any(it["grp"] == waits[slot] and it["id"] not in at for it in ds): return None
                lead = min([slot - at[it["id"]] for it in ds if it["grp"] == waits[slot]] or [99])
                fill[slot] += max(0, (s.o.get("lead", 7) - lead)) * 16
            fixedc = (4 if (slot + 1) in waits else 0) + 4 * s.hookcost.get(slot + 1, 0)
            budget = 8 - fixedc; fill[slot + 1] += fixedc
            if dsi < len(ds) and ds[dsi]["slot"] <= slot and ds[dsi]["est"] <= slot:
                it = ds[dsi]; dsi += 1; at[it["id"]] = slot; post[slot].append(it); budget -= 4; fill[slot + 1] += 4
            while budget > 0:
                c = [it for it in nd if it["cost"] <= budget and ready(it, slot)]
                if not c: break
                it = min(c, key=lambda x: (x["dl"], x["id"]))
                if it["cost"] == 4 and budget == 8 and len([x for x in c if x["cost"] == 4]) < 2 and any(x["cost"] == 8 for x in c):
                    it = min([x for x in c if x["cost"] == 8], key=lambda x: (x["dl"], x["id"]))
                at[it["id"]] = slot; post[slot].append(it); budget -= it["cost"]; fill[slot + 1] += it["cost"]
        for it in items:
            if it["id"] not in at:
                pre[nslot].append(it); fill[nslot] += it["cost"] + (8 if it["ds"] else 0)
        for g, extra in (("N0", 0), ("N1", 4)):
            l = [nslot + extra - at.get(it["id"], nslot) for it in ds if it["grp"] == g]
            if l: fill[nslot] += max(0, s.o.get("lead", 7) - min(l)) * 16
        cost = sum(max(16, 8 + f) for f in fill[1:]) + fill[0]
        return cost, pre, post
    def sched(s, mf, items, waits, hooks=None, carry=None, opt=None):
        p = s.p; hooks = hooks or {}; carry = carry or {}
        last = {}
        for i, it in enumerate(items):
            it.setdefault("deps", []); it.setdefault("ds", False); it.setdefault("grp", None); it["id"] = i
            if it.get("seq"):
                it["prev"] = last.get(it["seq"]); last[it["seq"]] = it
        ds = [it for it in items if it["ds"]]
        best = s.plan(len(mf), items, waits)
        if opt:
            key = (opt, len(ds), len(items))
            if key in PLANS:
                for it, sl in zip(ds, PLANS[key]): it["slot"] = sl
                best = s.plan(len(mf), items, waits)
            else:
                import random
                rnd = random.Random(1)
                for itn in range(s.o.get("optit", 1500)):
                    it = rnd.choice(ds); old = it["slot"]
                    it["slot"] = max(it["est"], min(len(mf) - 1, old + rnd.choice([-3, -2, -1, 1, 2, 3])))
                    r = s.plan(len(mf), items, waits)
                    if r is not None and r[0] <= best[0]: best = r
                    else: it["slot"] = old
                PLANS[key] = [it["slot"] for it in ds]
        cost, pre, post = best
        dslog = []
        def emit(it):
            it["fn"]()
            if it["ds"]: dslog.append(it["grp"])
        for slot, m in enumerate(mf):
            for it in pre[slot]: emit(it)
            if slot in waits:
                g = waits[slot]
                if g in dslog: n = len(dslog) - 1 - max(i for i, x in enumerate(dslog) if x == g)
                else: n = carry[g] + len(dslog)
                if not s.o.get("nowait"): p.wait(lg=min(n, 15))
            for h in hooks.get(slot, ()):
                if h() == "ds": dslog.append(None)
            m()
            for it in post[slot]: emit(it)
        for it in pre[len(mf)]: emit(it)
        s.over.append(cost)
    def rd_items(s, reads, buf, grp, est, dl, e0=None):
        n = len(reads)
        return [dict(fn=(lambda f=f: f(buf)), cost=4, ds=True, est=(est if e0 is None else e0), slot=est + ((dl - est + 1) * i) // n, dl=0, grp=grp) for i, f in enumerate(reads)]
    def misc_items(s, ops, est, dl, seq):
        n = len(ops)
        return [dict(fn=f, cost=4, est=est, dl=est + (dl - est) * (i + 1) / n, hard=dl + 1, seq=seq) for i, f in enumerate(ops)]
    def ring_adv(s, sreg, n, base, vdst, vbase):
        p = s.p
        return [lambda: p.s("s_add_u32", sreg, sreg, TILE),
                lambda: (p.s("s_cmp_eq_u32", sreg, base + n * TILE), p.s("s_cselect_b32", sreg, base, sreg)),
                lambda: p.v("v_add_u32", vdst, sreg, vbase)]
    def kmf(s, sb, czero=False):
        mf = []
        for al in range(4):
            for sx in range(4):
                for t in range(3):
                    D = Sq(sb, al, t)
                    C = (0 if czero else negm(t)) if sx == 0 else D
                    mf.append(lambda al=al, D=D, C=C, sx=sx, t=t: s.p.mfma(D, Abuf(al)[4 * sx:4 * sx + 4], Qcur(t, sx), C))
        return mf
    def rel_hook(s):
        s.release(); return "ds"
    def step(s, cur, nxt, tag, qk=True, need=None, inc=2):
        p = s.p; nx = cur ^ 1
        o = 48 if qk else 0
        mf = s.kmf(nx) if qk else []
        for ks in range(2):
            for t in range(3):
                for u in range(8):
                    mf.append(lambda ks=ks, t=t, u=u: p.mfma(Oq(u, t), Abuf(2 * ks + (u >> 2))[4 * (u & 3):4 * (u & 3) + 4], Pq(ks, t), Oq(u, t)))
                mf.append((lambda: p.nop(1)) if s.o.get("nol") else (lambda ks=ks, t=t: p.mfma(Lq(t), ONES, Pq(ks, t), Lq(t))))
        I = []
        if qk:
            I += s.rd_items(s.kreads(2), Abuf(2), "A2", 1, 8, 0) + s.rd_items(s.kreads(3), Abuf(3), "A3", 9, 16, 0)
            I += s.rd_items(s.treads('V', 0, 0), Abuf(0), "V0", 17, 30, 12) + s.rd_items(s.treads('V', 0, 1), Abuf(1), "V1", 31, 43, 24)
            I += s.rd_items(s.treads('V', 1, 0), Abuf(2), "V2", 44, 55, 36) + s.rd_items(s.treads('V', 1, 1), Abuf(3), "V3", 56, 67, 48)
            I.append(dict(fn=s.flag_read, cost=4, ds=True, est=60, slot=68, dl=0, grp="FL"))
        else:
            I += s.rd_items(s.treads('V', 1, 0), Abuf(2), "V2", 0, 9) + s.rd_items(s.treads('V', 1, 1), Abuf(3), "V3", 10, 19)
        I += s.rd_items(nxt[0], Abuf(0), "N0", o + 38 - len(nxt[0]) // 2, o + 46, o + 27) + s.rd_items(nxt[1], Abuf(1), "N1", o + 47 - len(nxt[0]) // 2, o + 53, o + 27)
        span = s.o.get('span', 88) if qk else 40
        k = 0
        for ks in range(2):
            for t in range(3):
                hd = o + 27 * ks + 9 * t
                for a in range(2):
                    q = Sq(cur, 2 * ks + a, t); P = Pq(ks, t); E = []
                    for r in range(4):
                        k += 1
                        E.append(dict(fn=(lambda q=q, r=r: p.v("v_exp_f32", q[r], q[r])), cost=8, est=0, dl=min(hd - 3, span * k / 48.0), hard=hd))
                    I += E
                    for h in range(2):
                        I.append(dict(fn=(lambda q=q, P=P, a=a, h=h: p.v("v_cvt_pk_bf16_f32", P[2 * a + h], q[2 * h], q[2 * h + 1])), cost=4, est=0,
                                      dl=min(hd - 2, span * k / 48.0 + 1), hard=hd, deps=E[2 * h:2 * h + 2]))
        if qk:
            regs = [(al, Sq(nx, al, t)[r]) for al in range(4) for t in range(3) for r in range(4)]
            ops = [(0, lambda: p.v("v_max3_f32", vMx, regs[0][1], regs[1][1], regs[2][1]))]
            for i in range(3, 47, 2): ops.append((regs[i + 1][0], lambda i=i: p.v("v_max3_f32", vMx, vMx, regs[i][1], regs[i + 1][1])))
            ops.append((3, lambda: p.v("v_max_f32", vMx, vMx, regs[47][1])))
            if s.o.get("nomax"): ops = ops[:1]
            for i, (al, f) in enumerate(ops): I.append(dict(fn=f, cost=4, est=12 * al + 16, dl=30 + 70 * (i + 1) / 24.0, seq="mx"))
            I += s.misc_items(s.ring_adv(sK, NKS, KRING, vK, vKbase), 24, 70, "rk")
            I += s.misc_items([(lambda: p.s("s_add_u32", sNeed, sNeed, inc)) if need is None else (lambda: p.s("s_mov_b32", sNeed, need))], 0, 70, "nd")
        vlast = [it for it in I if it.get("grp") == "V3"][-1]
        ra = s.misc_items(s.ring_adv(sV, NVS, VRING, vV, vVbase) + [lambda: p.v("v_xor_b32", vV1, 32, vV)], o + 0, o + 26, "rv")
        ra[2]["deps"] = [vlast]
        I += ra
        if qk: waits = {0: "C0", 12: "C1", 24: "A2", 36: "A3", 48: "V0", 52: "V1", 75: "FL"}
        else: waits = {0: "C0", 4: "C1", 27: "V2", 31: "V3"}
        if qk:
            hooks = {75: [s.rel_hook, lambda: s.check(tag)]}; s.hookcost = {75: 5}
        else:
            hooks = {31: [s.rel_hook]}; s.hookcost = {31: 2}
        s.sched(mf, I, waits, hooks, carry={"C0": s.ncarry, "C1": 0}, opt=("step", qk))
        s.ncarry = len(nxt[1])
        if qk:
            p.v("v_cmp_lt_f32", VCC, sThr, vMx)
            p.br("s_cbranch_vccnz", f"L_stub_{tag}", VCC.regs())
            p.label(f"L_back_{tag}")
            s.stubs.append((tag, nx))
    def qp_tile(s, n, nxt, need, fillers=()):
        p = s.p
        acc = QP1 if n < 8 else QP2
        mf = []
        for ks in range(2):
            for h in range(2):
                for t in range(3):
                    for uu in range(4):
                        D = acc(4 * h + uu, t)
                        mf.append(lambda ks=ks, h=h, D=D, uu=uu, t=t: p.mfma(D, Abuf(2 * ks + h)[4 * uu:4 * uu + 4], Xf(ks, t), 0 if (n == 0 and ks == 0) else D))
        I = s.rd_items(s.treads('WX', 1, 0), Abuf(2), "B2", 0, 7) + s.rd_items(s.treads('WX', 1, 1), Abuf(3), "B3", 8, 15)
        if need is not None: I.append(dict(fn=s.flag_read, cost=4, ds=True, est=16, slot=16, dl=0, grp="FL"))
        I += s.rd_items(nxt[0], Abuf(0), "N0", 24, 31) + s.rd_items(nxt[1], Abuf(1), "N1", 32, 39)
        blast = [it for it in I if it.get("grp") == "B3"][-1]
        if need is not None:
            ops = [lambda: p.s("s_mov_b32", sNeed, need)]
            if n < 8: ops += [lambda: p.v("v_add_u32", vW, wslot(n + 1), vTbase), lambda: p.v("v_xor_b32", vW1, 8, vW),
                              lambda: p.v("v_add_u32", vXa, xslot(n + 1), vXbase)]
            M = s.misc_items(ops, 0, 23, "m")
            for m in M[1:]: m["deps"] = [blast]
            I += M
        I += [dict(fn=f, cost=4, est=2, dl=100 + i, seq="f") for i, f in enumerate(fillers)]
        s.hookcost = {24: 5 if need is not None else 2}
        hk = [s.rel_hook] + ([lambda: s.check(f"p{n}")] if need is not None else [])
        s.sched(mf, I, {0: "C0", 12: "C1", 24: "FL" if need is not None else "B3"}, {24: hk}, carry={"C0": s.ncarry, "C1": 0})
        s.ncarry = len(nxt[1])
    def w2(s): return [s.treads('WX', 0, 0), s.treads('WX', 0, 1)]
    def rescale(s, sb, init):
        p = s.p
        m = [TMP[0], TMP[1], TMP[2]]; tm = TMP[3]; f = [TMP[4], TMP[5], TMP[6]]
        for t in range(3):
            r = [Sq(sb, al, t)[i] for al in range(4) for i in range(4)]
            p.v("v_max3_f32", m[t], r[0], r[1], r[2])
            for i in range(3, 15, 2): p.v("v_max3_f32", m[t], m[t], r[i], r[i + 1])
            p.v("v_max_f32", m[t], m[t], r[15])
        for op in ("v_permlane32_swap_b32", "v_permlane16_swap_b32"):
            for t in range(3):
                p.v("v_mov_b32", tm, m[t]); p.v(op, m[t], tm); p.v("v_max_f32", m[t], m[t], tm)
        for t in range(3):
            if not init:
                p.v("v_max_f32", m[t], 0, m[t])
                p.gen(f"v_exp_f32 {f[t]}, -{m[t]}", "trans", [f[t]], [m[t]])
            for i in range(4):
                if init: p.v("v_sub_f32", negm(t)[i], 0, m[t])
                else: p.v("v_sub_f32", negm(t)[i], negm(t)[i], m[t])
            for al in range(4):
                for i in range(4): p.v("v_sub_f32", Sq(sb, al, t)[i], Sq(sb, al, t)[i], m[t])
            if not init:
                for u in range(8):
                    for i in range(4): p.v("v_mul_f32", Oq(u, t)[i], f[t], Oq(u, t)[i])
                for i in range(4):
                    p.v("v_accvgpr_read_b32", tm, Lq(t)[i]); p.v("v_mul_f32", tm, f[t], tm); p.v("v_accvgpr_write_b32", Lq(t)[i], tm)
    def qconv_ops(s, q0, q1, dst):
        p = s.p; L = []
        for q in (q0, q1):
            for h in range(2): L.append(lambda q=q, h=h: p.v("v_pk_mul_f32", q[2 * h:2 * h + 2], q[2 * h:2 * h + 2], sC))
        for q in (q0, q1):
            for h in range(2): L.append(lambda q=q, h=h: p.v("v_cvt_pk_bf16_f32", q[2 * h], q[2 * h], q[2 * h + 1]))
        for h in range(2):
            L.append(lambda h=h: p.v("v_cndmask_b32", q0[2 * h + 1], q0[2 * h], q1[2 * h], sOdd))
            L.append(lambda h=h: p.v("v_cndmask_b32", q1[2 * h + 1], q1[2 * h], q0[2 * h], sOdd))
        for h in range(2): L.append(lambda h=h: p.v("v_accvgpr_write_b32", dst[h], q0[2 * h + 1]))
        for h in range(2): L.append(lambda h=h: p.v("v_accvgpr_write_b32", dst[2 + h], q1[2 * h + 1]))
        return L
    def qconv1_fillers(s):
        F = []
        for t in range(3):
            for sx in range(4):
                F += [f for f in s.qconv_ops(QP1(2 * sx, t), QP1(2 * sx + 1, t), Qf(t, sx))]
        return F
    def qconv2(s):
        p = s.p
        for sx in range(4):
            for t in range(3):
                t8 = V(12, 8)
                for a in range(2):
                    for i in range(4): p.v("v_accvgpr_read_b32", t8[4 * a + i], QP2(2 * sx + a, t)[i])
                for f in s.qconv_ops(t8[0:4], t8[4:8], Qf2(t, sx)): f()
    def zero_fillers(s):
        p = s.p; F = []
        for u in range(8):
            for t in range(3):
                for i in range(4): F.append(lambda u=u, t=t, i=i: p.v("v_mov_b32", Oq(u, t)[i], 0))
        for t in range(3):
            for i in range(4): F.append(lambda t=t, i=i: p.v("v_accvgpr_write_b32", Lq(t)[i], 0))
        return F
    def epi_ops(s, task):
        p = s.p; L = []; s.est = []
        inv = V(20, 2)
        for t in range(3):
            L.append(lambda t=t: p.v("v_accvgpr_read_b32", inv[0], Lq(t)[0]))
            L.append(lambda: p.v("v_rcp_f32", inv[0], inv[0]))
            for sx in range(4):
                q = TQ[(t * 4 + sx) % 3] if task == 0 else Of(8 + (sx >> 1), sx & 1, t)
                for a in range(2):
                    o = Oq(2 * sx + a, t)
                    for h in range(2): L.append(lambda o=o, h=h: p.v("v_pk_mul_f32", o[2 * h:2 * h + 2], o[2 * h:2 * h + 2], inv, extra=" op_sel_hi:[1,0]"))
                for a in range(2):
                    o = Oq(2 * sx + a, t)
                    for h in range(2): L.append(lambda o=o, h=h, q=q, a=a: p.v("v_cvt_pk_bf16_f32", q[2 * a + h], o[2 * h], o[2 * h + 1]))
                if task == 0:
                    for i in range(4): L.append(lambda i=i, q=q, sx=sx, t=t: p.v("v_accvgpr_write_b32", Of(sx >> 1, sx & 1, t)[i], q[i]))
                else:
                    s.est.append(lambda q=q, sx=sx, t=t: (p.s("s_add_u32", sT0, sOo[1], t * 131072), p.bstore(q, vO, SRD_WS, sT0, sx * 1024, s.o.get("oflag", " sc1")), s.vmlog.append("st")))
        return L
    def store_r1(s):
        p = s.p
        for t in range(3):
            p.s("s_add_u32", sT0, sOo[0], t * 131072)
            for sx in range(4): p.bstore(Of(sx >> 1, sx & 1, t), vO, SRD_WS, sT0, sx * 1024, s.o.get("oflag", " sc1"))
    def k2(s): return [s.kreads(0), s.kreads(1)]
    def prologue(s, task, fillers=()):
        p = s.p
        need = s.req([("K", 16 * task + 1), ("V", 16 * task)])
        I = s.rd_items(s.kreads(2), Abuf(2), "A2", 0, 5) + s.rd_items(s.kreads(3), Abuf(3), "A3", 6, 11)
        I.append(dict(fn=s.flag_read, cost=4, ds=True, est=14, slot=14, dl=0, grp="FL"))
        I += s.rd_items(s.kreads(0), Abuf(0), "N0", 24, 31) + s.rd_items(s.kreads(1), Abuf(1), "N1", 32, 39)
        alast = [it for it in I if it.get("grp") == "A3"][-1]
        M = s.misc_items([lambda: p.s("s_mov_b32", sNeed, need)] + s.ring_adv(sK, NKS, KRING, vK, vKbase), 0, 23, "m")
        M[3]["deps"] = [alast]
        I += M
        I += [dict(fn=f, cost=4, est=0, dl=100 + i, seq="f") for i, f in enumerate(fillers)]
        s.hookcost = {24: 3}
        s.sched(s.kmf(0, czero=True), I, {0: "C0", 12: "C1", 24: "FL"}, {24: [lambda: s.check(f"pro{task}")]}, carry={"C0": s.ncarry, "C1": 0})
        s.ncarry = 4
        s.rescale(0, True)
    def task(s, task):
        p = s.p
        QSEL[0] = task
        s.stamp(4 + 5 * task)
        s.prologue(task, s.zero_fillers() if task == 1 else ())
        s.stamp(5 + 5 * task)
        p.s("s_mov_b32", sCnt, 0)
        p.s("s_mov_b32", sNeed, s.R if task == 0 else s.R1)
        def loop(name, count, body):
            p.raw(".p2align 6")
            p.label(name)
            p.nop(2)
            if s.o.get("iter"):
                p.gen("s_memrealtime s[100:101]", "smem"); p.wait(lg=0)
                p.s("s_lshl_b32", M0, sCnt, 1); p.nop(1)
                p.gen(f"s_movreld_b32 s{64 + 16 * task}, s100", "salu")
            body()
            p.s("s_add_u32", sCnt, sCnt, 1)
            if task == 1:
                p.s("s_cmp_eq_u32", sCnt, s.o.get("stat", 2)); p.br("s_cbranch_scc1", "L_str1")
                p.s("s_cmp_eq_u32", sCnt, s.o.get("stat", 2) + 2); p.br("s_cbranch_scc1", "L_dosig0")
                p.label("L_str1_back")
            p.s("s_cmp_lt_u32", sCnt, count)
            p.br("s_cbranch_scc1", name)
        def body():
            s.step(0, s.k2(), f"t{task}e")
            if task == 0:
                s.step(1, s.w2(), "t0o", inc=4); s.qp_tile(8, s.k2(), None)
            else: s.step(1, s.k2(), "t1o")
        loop(f"L_loop{task}", 7, body)
        s.stamp(6 + 5 * task)
        if task == 1: s.poll_issue(0, sPo)
        if task == 1:
            p.v("v_add_u32", vW, uslot(TO[0]), vTbase); p.v("v_xor_b32", vW1, 8, vW)
            p.v("v_add_u32", vOr[1], 131072, vO); p.v("v_add_u32", vOr[2], 262144, vO)
        s.step(0, [s.treads('V', 0, 0), s.treads('V', 0, 1)], f"t{task}x", need=s.req([("V", 16 * task + 15)] + ([("U", TO[0])] if task else [("W", 15), ("X", 15)])))
        s.step(1, s.u2() if task else s.w2(), f"t{task}z", qk=False)
        if task == 0:
            s.qp_tile(15, s.k2(), s.req([("K", 16)]))
            s.qconv2()
        s.stamp(7 + 5 * task)
        if task == 0:
            for f in s.epi_ops(0): f()
        s.stamp(8 + 5 * task)
    def nonce_load(s):
        p = s.p
        p.gen("s_mov_b64 exec, 1", "salu")
        p.gen(f"global_load_dword {vPl4[2]}, {vO}, s[98:99] sc1", "vmem", [vPl4[2]], [vO, S(98, 2)])
        p.gen("s_mov_b64 exec, -1", "salu")
    def signal(s, field, word):
        p = s.p
        p.gen("s_mov_b64 exec, 1", "salu")
        p.v("v_mov_b32", vPoll, sNon)
        p.bstore(vPoll, vO, SRD_DBG, word, field * 128, " sc1", op="buffer_store_dword")
        p.gen("s_mov_b64 exec, -1", "salu")
    def poll_issue(s, field, word):
        p = s.p
        p.gen("s_mov_b64 exec, 1", "salu")
        p.bload(vPl4, vO, SRD_DBG, word, field * 128, " sc1")
        p.gen("s_mov_b64 exec, -1", "salu")
    def poll_test(s):
        p = s.p
        for i in range(4): p.v("v_xor_b32", vPl4[i], sNon, vPl4[i])
        p.v("v_or3_b32", vPl4[0], vPl4[0], vPl4[1], vPl4[2]); p.v("v_or_b32", vPl4[0], vPl4[0], vPl4[3])
        p.v("v_readfirstlane_b32", sT1, vPl4[0])
        p.s("s_cmp_eq_u32", sT1, 0)
    def poll_check(s, field, word):
        p = s.p; tag = f"pl{field}"
        s.poll_test()
        p.br("s_cbranch_scc0", f"L_gspin_{tag}")
        p.label(f"L_gspun_{tag}")
        s.gspins.append((tag, field, word))
    def oloads(s, n, dyn=False):
        p = s.p; r, i, half = n >> 3, (n >> 1) & 3, n & 1
        def ld(ks, t):
            if dyn: p.bload(Of(n, ks, t), vOr[t], SRD_OR, sOc, ks * 1024, " sc1")
            else: p.bload(Of(n, ks, t), vOr[t], SRD_OR, sOH[r][i], half * 2048 + ks * 1024, s.o.get("olflag", " sc1"))
            s.vmlog.append(n)
        return [(lambda ks=ks, t=t: ld(ks, t)) for ks in range(2) for t in range(3)]
    def vmwait(s, tag):
        n = len(s.vmlog) - 1 - max(i for i, x in enumerate(s.vmlog) if x == tag)
        s.p.wait(vm=min(n, 63))
    def u2(s): return [s.treads('W', 0, 0), s.treads('W', 0, 1)]
    def next_oc(s):
        p = s.p
        return [lambda: p.s("s_lshr_b32", sOc, sTm, 1), lambda: p.s("s_add_u32", sOc, sOc, sNc), lambda: p.s("s_and_b32", sOc, sOc, 3),
                lambda: p.s("s_lshl_b32", sT1, sKg, 2), lambda: p.s("s_add_u32", sOc, sOc, sT1), lambda: p.s("s_lshl_b32", sOc, sOc, 13),
                lambda: p.s("s_add_u32", sOc, sOc, sOo[0]), lambda: p.s("s_and_b32", sT1, sTm, 1), lambda: p.s("s_lshl_b32", sT1, sT1, 11),
                lambda: p.s("s_add_u32", sOc, sOc, sT1), lambda: p.s("s_add_u32", sTm, sTm, 1)]
    def op_tile(s, n, nxt, nextu=None, loads=(), pre=(), misc=(), czero=False, fill=()):
        p = s.p
        mf = []
        for ks in range(2):
            for h in range(2):
                for t in range(3):
                    for uu in range(4):
                        D = OPa(4 * h + uu, t)
                        mf.append(lambda ks=ks, h=h, D=D, uu=uu, t=t: p.mfma(D, Abuf(2 * ks + h)[4 * uu:4 * uu + 4], Of(n, ks, t), 0 if (czero and ks == 0) else D))
        if nextu is None:
            mf = mf[:24]
            for sx in (3, 2, 1, 0):
                for t in range(3):
                    for u in (2 * sx, 2 * sx + 1):
                        mf.append(lambda u=u, t=t: p.mfma(OPa(u, t), Abuf(2 + (u >> 2))[4 * (u & 3):4 * (u & 3) + 4], Of(n, 1, t), OPa(u, t)))
        I = s.rd_items(s.treads('W', 1, 0), Abuf(2), "B2", 0, 7) + s.rd_items(s.treads('W', 1, 1), Abuf(3), "B3", 8, 15)
        if nextu is not None: I.append(dict(fn=s.flag_read, cost=4, ds=True, est=16, slot=16, dl=0, grp="FL"))
        I += s.rd_items(nxt[0], Abuf(0), "N0", 24, 31) + s.rd_items(nxt[1], Abuf(1), "N1", 32, 39)
        blast = [it for it in I if it.get("grp") == "B3"][-1]
        if nextu is not None:
            M = s.misc_items([lambda: p.s("s_mov_b32", sNeed, s.req([("U", nextu)])), lambda: p.v("v_add_u32", vW, uslot(nextu), vTbase),
                              lambda: p.v("v_xor_b32", vW1, 8, vW)], 0, 23, "m")
            for m in M[1:]: m["deps"] = [blast]
            I += M
        if misc: I += s.misc_items(list(misc), 0, 20, "oc")
        I += [dict(fn=f, cost=4, est=e, dl=e, seq="ld") for i, (f, e) in enumerate(loads)]
        I += [dict(fn=f, cost=4, est=0, dl=50 + i, seq="fl") for i, f in enumerate(fill)]
        s.hookcost = {24: 5 if nextu is not None else 2}
        hk = [s.rel_hook] + ([lambda: s.check(f"u{n}")] if nextu is not None else [])
        s.sched(mf, I, {0: "C0", 12: "C1", 24: "FL" if nextu is not None else "B3"}, {0: list(pre), 24: hk}, carry={"C0": s.ncarry, "C1": 0})
        s.ncarry = len(nxt[1])
    def tail(s):
        p = s.p
        s.stamp(0, True)
        epi = s.epi_ops(1)
        sp = s.o.get("sp", [0, 4, 4, 4])
        sg = s.o.get("sg", 5); r2at = s.o.get("r2at", 7)
        LD = {j: 2 + j for j in range(6)}; LD.update({r2at + i: 10 + i for i in range(6)})
        est = list(s.est)
        for j, n in enumerate(TO):
            pre = []; loads = []; misc2 = []
            if j >= 4: pre.append(lambda n=n: s.vmwait(n))
            if j == 0: pre += [lambda: p.wait(vm=0), lambda: s.poll_check(0, sPo)]
            if s.o.get("fold"):
                if j == 0: misc2 = epi[:60]
                if j == 1: misc2 = epi[60:]
            elif j == 0: pre = epi + pre
            if j == sg: pre += [lambda: s.vmwait("st"), lambda: s.signal(1, sFo)]
            vm = []
            if j in LD: vm += s.oloads(LD[j])
            if j < len(sp):
                k = sp[j]; st, est = est[:k], est[k:]
                for i, f in enumerate(st): vm.insert(min(len(vm), 2 * i + 1), f)
            loads = [(f, 2 + (44 * i) // max(1, len(vm))) for i, f in enumerate(vm)]
            if j == r2at - 1: loads = loads + [(lambda: (s.poll_issue(1, sPo), s.vmlog.append("pl")), 45)]
            if j == r2at: pre += [lambda: s.vmwait("pl"), lambda: s.poll_check(1, sPo)]
            last = j == len(TO) - 1
            if last:
                pre += [lambda: p.s("s_mul_i32", sT0, sWave, 6144)]
                for gi, sx in enumerate((3, 2, 1)):
                    for t in range(3):
                        def st(sx=sx, t=t):
                            if t == 0:
                                p.s("s_add_u32", sCnt, sKg, sx); p.s("s_and_b32", sCnt, sCnt, 3); p.s("s_mul_i32", sCnt, sCnt, 55296); p.s("s_add_u32", sCnt, sCnt, sT0)
                            p.s("s_add_u32", sT1, sCnt, (sx - 1) * 18432 + t * 2048)
                            for a in range(2): p.bstore(OPa(2 * sx + a, t), vO, SRD_PT, sT1, a * 1024, s.o.get("pflag", " sc1"))
                        loads.append((st, 24 + 6 * gi + 2 * t + 5))
            s.op_tile(n, [[], []] if last else s.u2(), None if last else TO[j + 1], loads, pre, czero=(j == 0), fill=misc2)
            if j in (0, 1, 2, 4, 6, 8, 10, 12): s.stamp(1 + (0, 1, 2, 4, 6, 8, 10, 12).index(j), True)
        s.stamp(14); s.stamp(9, True)
        p.v("v_and_b32", vOut, 15, vLane); p.v("v_lshlrev_b32", vOut, 11, vOut); p.v("v_and_b32", V(135), 48, vLane); p.v("v_add_u32", vOut, vOut, V(135))
        for a in range(2):
            for t in range(3):
                for i in range(4): p.v("v_accvgpr_read_b32", QP1(a, t)[i], OPa(a, t)[i])
        s.stamp(10, True)
        p.wait(vm=0)
        s.stamp(11, True)
        s.signal(2, sFl)
        s.poll_issue(2, sPl); p.wait(vm=0)
        s.stamp(12, True)
        s.poll_check(2, sPl)
        s.stamp(13, True)
        p.s("s_mul_i32", sCnt, sKg, 55296); p.s("s_add_u32", sCnt, sCnt, sT0)
        Pt = lambda src, t, a: V(152 + ((t * 3 + src) * 2 + a) * 4, 4)
        for t in range(3):
            for src in range(3):
                p.s("s_add_u32", sT1, sCnt, src * 18432 + t * 2048)
                for a in range(2): p.bload(Pt(src, t, a), vO, SRD_PT, sT1, a * 1024, s.o.get("plflag", " sc1"))
        for t in range(3):
            p.wait(vm=6 * (2 - t) + t)
            for a in range(2):
                for h in range(2):
                    q = [QP1(a, t)[2 * h:2 * h + 2]] + [Pt(src, t, a)[2 * h:2 * h + 2] for src in range(3)]
                    p.v("v_pk_add_f32", q[0], q[0], q[1]); p.v("v_pk_add_f32", q[2], q[2], q[3]); p.v("v_pk_add_f32", q[0], q[0], q[2])
            q0, q1 = QP1(0, t), QP1(1, t); o = Pt(0, t, 0)
            for q in (q0, q1):
                for h in range(2): p.v("v_cvt_pk_bf16_f32", q[2 * h], q[2 * h], q[2 * h + 1])
            for h in range(2):
                p.v("v_cndmask_b32", o[h], q0[2 * h], q1[2 * h], sOdd)
                p.v("v_cndmask_b32", o[2 + h], q1[2 * h], q0[2 * h], sOdd)
            p.s("s_mov_b32", sT1, t * 32768)
            p.bstore(o, vOut, SRD_OUT, sT1, 0, s.o.get("outflag", " nt"))
    def dma_groups(s, kind, n, regs=None, alt=False):
        p = s.p; G = []
        sA = sT1 if alt else sT0
        if kind in "KV":
            lds = kslot(n) if kind == "K" else vslot(n); srd = SRD_K if kind == "K" else SRD_V
            def grp(q):
                if regs is None: p.s("s_mov_b32", M0, lds + q * 4096)
                p.s("s_add_u32", sA, sKV[n // 16], (n % 16) * TILE + q * 4096)
                for o in range(4):
                    b = 4 * q + o
                    vo = vDk[(b >> 1) & 3] if kind == "K" else vDv[(b >> 1) & 1]
                    if regs is None: p.dma(vo, srd, sA, o * 1024, s.NT)
                    else: p.bload(regs[4 * b:4 * b + 4], vo, srd, sA, o * 1024, s.NT)
            return [(lambda q=q: grp(q)) for q in range(4)], 16
        if kind == "U":
            r, i, half = n >> 3, (n >> 1) & 3, n & 1
            def grp(q):
                if q == 0:
                    p.s("s_add_u32", sWr, sNc, i); p.s("s_and_b32", sWr, sWr, 3); p.s("s_lshl_b32", sA, sKg, 2); p.s("s_add_u32", sWr, sWr, sA)
                    p.s("s_lshl_b32", sWr, sWr, 1); p.s("s_xor_b32", sA, sPar, r); p.s("s_add_u32", sWr, sWr, sA); p.s("s_lshl_b32", sWr, sWr, 17)
                if regs is None: p.s("s_mov_b32", M0, uslot(n) + q * 4096)
                p.s("s_add_u32", sA, sWr, half * 65536 + (32 * (q >> 1) + 8 * (q & 1)) * 1024)
                for o in range(4):
                    if regs is None: p.dma(vDu[o], SRD_WO, sA, o * 1024, s.o.get("wflag", ""))
                    else: p.bload(regs[16 * q + 4 * o:16 * q + 4 * o + 4], vDu[o], SRD_WO, sA, o * 1024, s.o.get("wflag", ""))
            return [(lambda q=q: grp(q)) for q in range(4)], 16
        if kind == "X":
            def grp(q):
                if q == 0:
                    p.s("s_add_u32", sXr, sRot, n % 8); p.s("s_and_b32", sXr, sXr, 7); p.s("s_lshl_b32", sXr, sXr, 7)
                else: p.s("s_add_u32", sXr, sXr, 32768)
                p.s("s_mov_b32", M0, xslot(n) + q * 4096)
                for o in range(4 if q < 4 else 2): p.dma(vDx[o], SRD_X, sXr, o * 1024, s.o.get("xflag", ""))
            return [(lambda q=q: grp(q)) for q in range(5)], 18
        def grp(q):
            if q == 0:
                p.s("s_add_u32", sWr, sRot, n % 8); p.s("s_and_b32", sWr, sWr, 7); p.s("s_lshl_b32", sWr, sWr, 19)
                p.s("s_add_u32", sWr, sWr, sWo[n // 8])
            else: p.s("s_add_u32", sWr, sWr, 131072)
            p.s("s_mov_b32", M0, wslot(n) + q * 4096)
            for o in range(4): p.dma(vDw[o], SRD_WQ, sWr, o * 1024, s.o.get("wflag", ""))
        return [(lambda q=q: grp(q)) for q in range(4)], 16
    def dma_tile(s, kind, n, regs=None):
        if kind in s.o.get("skipk", ""): return 0
        G, c = s.dma_groups(kind, n, regs)
        for g in G: g()
        return c
    def late_setup(s): pass
    def publish(s, n):
        p = s.p
        p.s("s_max_u32", sPm, sPm, n)
        p.v("v_mov_b32", vLf, sPm)
        p.ds_write("ds_write_b32", vLz, vLf, FLAGS - 131072)
    def loader(s):
        p = s.p
        p.s("s_mov_b32", sF, 0); p.s("s_mov_b32", sPm, 0)
        p.v("v_mov_b32", vLz, 131072)
        p.v("v_lshlrev_b32", vO, 4, vLane)
        lag = s.o.get("lag", 1)
        if s.o.get("fake") or s.o.get("indep"): s.publish(1000)
        vm = []
        where = {}; items = 0; pub = 0
        def landed(l):
            pend = [x[1] for x in vm[len(vm) - l:] if x[1] is not None] if l else []
            return min(pend) if pend else items
        for u, (op, kind, n, nf) in enumerate(s.T):
            if s.o.get("fake"): break
            if s.o.get("loadonly") and u >= s.o["loadonly"]: break
            if nf > 0 and not s.o.get("loadonly"):
                p.s("s_cmp_ge_u32", sF, nf)
                p.br("s_cbranch_scc1", f"L_free_{u}")
                p.s("s_mov_b32", sNeed, nf); p.s("s_mov_b32", sPub, items); p.s("s_mov_b32", sPb1, landed(1))
                p.gen(f"s_call_b64 {sRet}, L_poll", "salu", [sRet])
                p.label(f"L_free_{u}")
            if u < 3:
                vm.append((18 if kind == "X" else 16, items)); items += 1
                if u < 2: continue
            elif op == "dma":
                vm.append((s.dma_tile(kind, n), items)); items += 1
            elif op == "stage":
                where[(kind, n)] = len(vm)
                vm.append((s.dma_tile(kind, n, stage_regs(s.reg[(kind, n)])), None))
            else:
                p.wait(vm=min(63, sum(x[0] for x in vm[where[(kind, n)] + 1:])))
                regs = stage_regs(s.reg[(kind, n)])
                p.v("v_add_u32", V(31), {"K": kslot, "V": vslot, "U": uslot}[kind](n), vO)
                for b in range(16): p.ds_write("ds_write_b128", V(31), regs[4 * b:4 * b + 4], b * 1024)
                p.wait(lg=0)
                items += 1
            l = min(lag if u >= s.nP0 else s.o.get("lag0", 2), len(vm))
            if op != "write": p.wait(vm=sum(x[0] for x in vm[len(vm) - l:]))
            if landed(l) > pub:
                pub = landed(l); s.publish(pub)
            if u in (1, 4, 10, 20, 30, 40): s.stamp({1: 1, 4: 2, 10: 3, 20: 4, 30: 5, 40: 6}[u])
            e0 = len(s.T) - 19
            if u >= e0 and u - e0 < 15: s.stamp(u - e0, True)
        done = list(range(items + 1))
        for l in range(lag - 1, -1, -1):
            p.wait(vm=16 * l)
            s.publish(done[len(done) - 1 - l])
        s.stamp(13)
        s.stamp_out()
        p.br("s_branch", "L_k1_end")
        p.label("L_poll")
        q = V(32, 4)
        p.ds_read("ds_read_b128", q, vLz, FLAGS - 131072 + 16); p.wait(lg=0)
        p.v("v_min3_u32", q[0], q[0], q[1], q[2]); p.v("v_readfirstlane_b32", sF, q[0])
        p.s("s_cmp_ge_u32", sF, sNeed); p.br("s_cbranch_scc1", "L_poll_ret")
        p.wait(vm=16)
        s.publish(sPb1)
        p.ds_read("ds_read_b128", q, vLz, FLAGS - 131072 + 16); p.wait(lg=0)
        p.v("v_min3_u32", q[0], q[0], q[1], q[2]); p.v("v_readfirstlane_b32", sF, q[0])
        p.s("s_cmp_ge_u32", sF, sNeed); p.br("s_cbranch_scc1", "L_poll_ret")
        p.wait(vm=0)
        s.publish(sPub)
        p.label("L_poll_spin")
        if s.o.get("slp"): p.gen(f"s_sleep {s.o['slp']}", "salu")
        s.bound()
        p.ds_read("ds_read_b128", q, vLz, FLAGS - 131072 + 16); p.wait(lg=0)
        p.v("v_min3_u32", q[0], q[0], q[1], q[2]); p.v("v_readfirstlane_b32", sF, q[0])
        p.s("s_cmp_ge_u32", sF, sNeed); p.br("s_cbranch_scc0", "L_poll_spin")
        p.label("L_poll_ret")
        p.gen(f"s_setpc_b64 {sRet}", "branch", [], [sRet])
    srd = G1.K1.srd
    def build(s, name):
        p = s.p
        p.raw(f".globl {name}"); p.raw(".p2align 8"); p.raw(f".type {name},@function"); p.label(name)
        p.s("s_cmp_ge_u32", S(2), 256); p.br("s_cbranch_scc1", "L_k1_end")
        if s.o.get("stamps"): p.gen("s_memtime s[100:101]", "smem", [S(100, 2)])
        p.smem("s_load_dwordx16", S(64, 16), S(0, 2), 0)
        p.smem("s_load_dwordx8", S(80, 8), S(0, 2), 64)
        p.smem("s_load_dwordx2", S(88, 2), S(0, 2), 96)
        p.v("v_lshrrev_b32", V(1), 6, V(0))
        p.v("v_readfirstlane_b32", sWave, V(1))
        p.gen("s_getpc_b64 s[90:91]", "salu", [S(90, 2)])
        p.label("L_pc")
        p.gen(f"s_sub_u32 s90, s90, L_pc-{name}", "salu", [S(90)], [S(90)]); p.s("s_subb_u32", S(91), S(91), 0)
        p.s("s_lshr_b32", S(6), S(2), 3); p.s("s_lshl_b32", S(6), S(6), 10)
        p.v("v_lshlrev_b32", V(140), 4, V(0)); p.v("v_lshl_add_u32", V(140), S(6), 2, V(140))
        p.gen(f"v_min_u32 v140, L_k1_end-{name}-16, v140", "valu", [V(140)], [V(140)])
        p.gen("global_load_dwordx4 v[136:139], v140, s[90:91]", "vmem", [V(136, 4)], [V(140), S(90, 2)])
        p.v("v_and_b32", vLane, 63, V(0))
        p.v("v_mov_b32", vZ, 131072)
        for i in range(4): p.v("v_mov_b32", V(252 + i), 0)
        p.ds_write("ds_write_b128", vZ, V(252, 4), FLAGS - 131072); p.ds_write("ds_write_b128", vZ, V(252, 4), FLAGS - 131072 + 16)
        p.s("s_mov_b32", sSpin, 0)
        sb = S(4); sh = S(5); sP = S(8)
        if s.o.get("mapz"):
            p.s("s_bfe_u32", sP, S(2), 0x10002)
            p.s("s_bfe_u32", sb, S(2), 0x10001); p.s("s_lshl_b32", sb, sb, 2); p.s("s_bfe_u32", S(9), S(2), 0x20003); p.s("s_add_u32", sb, sb, S(9))
            p.s("s_and_b32", sh, S(2), 1); p.s("s_lshl_b32", sh, sh, 3); p.s("s_lshr_b32", S(10), S(2), 5); p.s("s_add_u32", sh, sh, S(10))
        else:
            p.s("s_bfe_u32", sP, S(2), 0x10003)
            p.s("s_bfe_u32", sb, S(2), 0x10002); p.s("s_lshl_b32", sb, sb, 2); p.s("s_bfe_u32", S(9), S(2), 0x20004); p.s("s_add_u32", sb, sb, S(9))
            p.s("s_and_b32", sh, S(2), 3); p.s("s_lshl_b32", sh, sh, 2); p.s("s_lshr_b32", S(10), S(2), 6); p.s("s_add_u32", sh, sh, S(10))
            p.s("s_lshl_b32", S(10), S(10), 1)
        p.s("s_lshl_b32", sh, sh, 1)
        if s.o.get("norot"): p.s("s_mov_b32", sRot, 0)
        elif s.o.get("rot") == "b": p.s("s_lshl_b32", sRot, S(9), 1)
        elif s.o.get("rot") == "h": p.s("s_mov_b32", sRot, S(10))
        else:
            p.s("s_lshl_b32", sRot, S(9), 1); p.s("s_lshr_b32", S(10), S(10), 1); p.s("s_add_u32", sRot, sRot, S(10))
        if s.o.get("noswap"): p.s("s_mov_b32", S(11), 0)
        else: p.s("s_and_b32", S(11), S(9), 1)
        for tk in range(2):
            if tk: p.s("s_xor_b32", S(11), S(11), 1)
            p.s("s_lshl_b32", sKV[tk], S(11), 18); p.s("s_lshl_b32", sWo[tk], S(11), 8); p.s("s_lshl_b32", sOo[tk], S(11), 12)
        g = V(13); c16 = V(14); t1 = V(15); t2 = V(16); ph = V(17); t3 = V(18); x4 = V(19)
        p.v("v_lshrrev_b32", g, 4, vLane); p.v("v_and_b32", c16, 15, vLane)
        p.v("v_mov_b32", t3, 0x78)
        p.v("v_and_b32", x4, 3, vLane); p.v("v_bfe_u32", t2, vLane, 2, 2)
        p.v("v_lshlrev_b32", t1, 6, g)
        p.v("v_lshl_add_u32", ph, t2, 13, t1); p.v("v_lshl_add_u32", vDw[0], x4, 4, ph)
        p.v("v_xor_b32", vDw[2], 16, vDw[0])
        p.v("v_add_u32", vDw[3], 3 * (32768 - 1024), vDw[2]); p.v("v_add_u32", vDw[2], 2 * (32768 - 1024), vDw[2])
        p.v("v_add_u32", vDw[1], 32768 - 1024, vDw[0])
        p.v("v_lshl_add_u32", t1, t2, 8, t1)
        for k in range(4):
            p.v("v_xor_b32", ph, PHI[k], x4); p.v("v_lshl_add_u32", vDk[k], ph, 4, t1)
        for k in range(2):
            p.v("v_xor_b32", ph, 2 * k, x4); p.v("v_lshl_add_u32", vDv[k], ph, 4, t1)
        p.v("v_bfe_u32", t2, vLane, 2, 3); p.v("v_lshrrev_b32", t1, 5, vLane); p.v("v_lshlrev_b32", t1, 6, t1)
        p.v("v_lshl_add_u32", t2, t2, 10, t1)
        for k in range(2):
            p.v("v_bfe_u32", t1, vLane, 4, 1); p.v("v_add_u32", t1, 2 * k, t1); p.v("v_lshlrev_b32", t1, 1, t1)
            p.v("v_lshrrev_b32", t1, t1, t3); p.v("v_and_b32", t1, 3, t1)
            p.v("v_xor_b32", t1, t1, x4); p.v("v_lshl_add_u32", vDx[k], t1, 4, t2)
        p.v("v_add_u32", vDx[2], 2 * 7168, vDx[0]); p.v("v_add_u32", vDx[3], 3 * 7168, vDx[1]); p.v("v_add_u32", vDx[1], 7168, vDx[1])
        p.wait(lg=0)
        ptr = lambda i: S(64 + 2 * i, 2)
        so = S(6); so2 = S(7)
        p.s("s_cmp_eq_u32", sP, 1)
        for i in range(5): p.s("s_cselect_b64", ptr(i), ptr(5 + i), ptr(i))
        p.s("s_mul_i32", so, sb, 147456)
        s.srd(SRD_X, ptr(0), so, 147456)
        p.s("s_lshl_b32", so, sh, 8); p.s("s_sub_u32", so2, 4194304, so)
        s.srd(SRD_WQ, ptr(3), so, so2)
        p.s("s_cmp_eq_u32", sWave, 3); p.br("s_cbranch_scc0", "L_noearly")
        for _, k, n, _ in s.T[:3]: s.dma_tile(k, n)
        p.label("L_noearly")
        p.s("s_lshl_b32", so, sb, 5); p.s("s_add_u32", so, so, sh); p.s("s_lshl_b32", so, so, 18)
        s.srd(SRD_K, ptr(1), so, 524288); s.srd(SRD_V, ptr(2), so, 524288)
        p.s("s_lshl_b32", so, sP, 3); p.s("s_add_u32", so, so, sb)
        p.s("s_mul_i32", so, so, 9); p.s("s_min_u32", so2, sWave, 2); p.s("s_mul_i32", so2, so2, 3); p.s("s_add_u32", so, so, so2)
        p.s("s_lshl_b32", so, so, 17); p.s("s_lshl_b32", so2, sh, 12); p.s("s_add_u32", so, so, so2)
        p.s("s_sub_u32", so2, 18874368, so)
        s.srd(SRD_WS, ptr(12), so, so2)
        def stamp_init():
            if s.o.get("stamps"):
                p.s("s_lshl_b32", so, S(2), 2); p.s("s_add_u32", so, so, sWave); p.s("s_lshl_b32", so, so, 6)
                p.s("s_add_u32", so, so, 64 << 20)
                s.srd(S(12, 4), ptr(12), so, 64)
                if s.o.get("dbgout"):
                    p.s("s_lshl_b32", so, S(2), 2); p.s("s_add_u32", so, so, sWave); p.s("s_cmp_eq_u32", so, s.o["dbgout"] * 4)
                    p.s("s_cselect_b32", so2, 64, 0)
                    s.srd(S(12, 4), ptr(11), 0, so2)
                for i in range(16): p.s("s_mov_b64", S(64 + 2 * i, 2), 0)
            s.stamp(0)
        s.stamp_init = stamp_init; s.ptr = ptr

        p.s("s_lshl_b32", so, sP, 3); p.s("s_add_u32", S(96), so, sb)
        p.s("s_lshl_b32", S(97), sP, 10); p.s("s_mul_i32", so, sb, 144 * 2048); p.s("s_add_u32", S(97), S(97), so)
        p.s("s_lshr_b32", sPar, sOo[0], 12)
        p.s("s_lshr_b32", sKg, sh, 3); p.s("s_bfe_u32", sNc, sh, 0x20001); p.s("s_mov_b32", sPB, S(96))
        p.barrier()
        p.s("s_cmp_eq_u32", sWave, 3); p.br("s_cbranch_scc1", "L_loader")
        p.s("s_mov_b64", S(98, 2), ptr(11))
        p.s("s_or_b32", so, S(2), sWave); p.s("s_cmp_eq_u32", so, 0); p.br("s_cbranch_scc0", "L_nononce")
        p.gen("s_memrealtime s[6:7]", "smem", [S(6, 2)]); p.wait(lg=0)
        p.s("s_or_b32", sNon, S(6), 1)
        p.gen("s_mov_b64 exec, 1", "salu")
        p.v("v_mov_b32", V(130), sNon); p.v("v_mov_b32", V(132), 0)
        p.gen("global_store_dword v132, v130, s[98:99] sc1", "vmem", [], [V(130), V(132), S(98, 2)])
        p.gen("s_mov_b64 exec, -1", "salu")
        p.label("L_nononce")
        p.s("s_mul_i32", so, sPB, 9); p.s("s_mul_i32", so2, sWave, 3); p.s("s_add_u32", so, so, so2); p.s("s_lshl_b32", so, so, 17)
        s.srd(SRD_OR, ptr(12), so, 3 * 131072)
        p.s("s_lshl_b32", so, sPB, 2); p.s("s_add_u32", so, so, sNc); p.s("s_mul_i32", sPl, so, 384); p.s("s_lshl_b32", so2, sWave, 4); p.s("s_add_u32", sPl, sPl, so2)
        p.s("s_lshl_b32", so2, sKg, 2); p.s("s_add_u32", sFl, sPl, so2)
        p.s("s_mul_i32", so, so, 4 * 55296); p.s("s_add_u32", so, so, PARTOFF)
        s.srd(SRD_PT, ptr(12), so, 4 * 55296)
        p.s("s_lshl_b32", so, sPB, 2); p.s("s_add_u32", so, so, sKg); p.s("s_mul_i32", sPo, so, 384); p.s("s_lshl_b32", so2, sWave, 4); p.s("s_add_u32", sPo, sPo, so2)
        p.s("s_lshl_b32", so2, sNc, 2); p.s("s_add_u32", sFo, sPo, so2)
        p.s("s_mul_i32", so, sWave, 48 * 2048); p.s("s_add_u32", so, so, S(97)); p.s("s_lshl_b32", so2, sNc, 8); p.s("s_add_u32", so, so, so2)
        p.s("s_lshl_b32", so2, sKg, 6); p.s("s_add_u32", so, so, so2); p.s("s_sub_u32", so2, 2359296, so)
        s.srd(SRD_OUT, ptr(10), so, so2)
        s.srd(SRD_DBG, ptr(12), FLAGOFF, 64 * 384)
        for i in range(4):
            p.s("s_add_u32", so, sNc, i); p.s("s_and_b32", so, so, 3); p.s("s_lshl_b32", so2, sKg, 2); p.s("s_add_u32", so, so, so2); p.s("s_lshl_b32", so, so, 13)
            p.s("s_add_u32", sOH[0][i], so, sOo[0]); p.s("s_add_u32", sOH[1][i], so, sOo[1])
        stamp_init()
        if s.o.get("loadonly") and not s.o.get("indep"): p.br("s_branch", "L_k1_end")
        p.v("v_and_b32", t1, 1, g); p.v("v_xor_b32", t1, t1, c16); p.v("v_lshlrev_b32", t1, 4, t1)
        p.v("v_and_b32", t2, 1, c16); p.v("v_lshl_add_u32", t1, t2, 3, t1); p.v("v_lshl_add_u32", vTbase, g, 11, t1)
        p.v("v_and_b32", t1, 1, g); p.v("v_cmp_eq_u32", sOdd, 1, t1)
        p.v("v_lshrrev_b32", t1, 2, c16); p.v("v_lshlrev_b32", t2, 1, t1); p.v("v_lshrrev_b32", ph, t2, t3); p.v("v_and_b32", ph, 3, ph)
        p.v("v_xor_b32", ph, g, ph)
        p.v("v_lshlrev_b32", t1, 11, t1); p.v("v_and_b32", t2, 3, c16); p.v("v_lshl_add_u32", t1, t2, 6, t1)
        p.v("v_lshl_add_u32", vKbase, ph, 4, t1)
        p.v("v_lshrrev_b32", t1, 3, c16); p.v("v_lshlrev_b32", t1, 10, t1); p.v("v_and_b32", t2, 7, c16); p.v("v_lshl_add_u32", t1, t2, 6, t1)
        p.v("v_lshl_add_u32", vXbase, ph, 4, t1)
        p.s("s_mul_i32", S(6), sWave, 6144); p.v("v_add_u32", vXbase, S(6), vXbase)
        p.v("v_lshlrev_b32", t1, 11, g); p.v("v_lshrrev_b32", t2, 2, c16); p.v("v_lshl_add_u32", t1, t2, 6, t1)
        p.v("v_and_b32", t2, 1, g); p.v("v_lshl_add_u32", t1, t2, 5, t1); p.v("v_and_b32", t2, 3, c16); p.v("v_lshl_add_u32", vVbase, t2, 3, t1)
        p.v("v_lshlrev_b32", vO, 4, vLane)
        p.s("s_lshl_b32", S(6), sWave, 2); p.s("s_add_u32", S(6), S(6), FLAGS + 16); p.v("v_mov_b32", vFa, S(6)); p.v("v_mov_b32", vEp, 1)
        p.s("s_mov_b32", sK, kslot(0)); p.s("s_mov_b32", sV, vslot(0))
        p.v("v_add_u32", vK, sK, vKbase); p.v("v_add_u32", vV, sV, vVbase); p.v("v_xor_b32", vV1, 32, vV)
        p.v("v_add_u32", vW, wslot(0), vTbase); p.v("v_xor_b32", vW1, 8, vW); p.v("v_add_u32", vXa, xslot(0), vXbase)
        p.s("s_mov_b32", sThr, f2u(float("inf") if s.o.get("nothr") else THR)); p.s("s_mov_b32", sC[0], f2u(CSCALE)); p.s("s_mov_b32", sC[1], f2u(CSCALE))
        p.v("v_mov_b32", V(13), 0x3F803F80)
        for i in range(4): p.v("v_accvgpr_write_b32", ONES[i], V(13))
        for f in s.zero_fillers(): f()
        s.stamp(1)
        p.s("s_mov_b32", sNeed, s.req([("W", 0), ("X", 0)]))
        s.flag_read(); p.wait(lg=0); s.check("init")
        s.stamp(2)
        s.prime(s.treads('WX', 0, 0), s.treads('WX', 0, 1)); s.ncarry = 8
        for n in range(8):
            p.cmt(f"---- P0 tile {n}")
            zf = [(lambda i=i: p.v("v_accvgpr_write_b32", A(i), 0)) for i in range(12 * n, 12 * n + 12)]
            if n < 7: nr = s.w2(); need = s.req([("W", n + 1), ("X", n + 1)])
            else: nr = s.k2(); need = s.req([("K", 0)])
            s.qp_tile(n, nr, need, zf)
        for f in s.qconv1_fillers(): f()
        p.wait(vm=0)
        s.stamp(3)
        s.task(0)
        s.task(1)
        s.tail()
        s.stamp(13); s.stamp(14, True)
        s.stamp_out()
        p.br("s_branch", "L_k1_end")
        p.label("L_str1")
        s.store_r1(); s.nonce_load()
        p.br("s_branch", "L_str1_back")
        p.label("L_getnonce")
        s.bound(); s.nonce_load()
        p.label("L_dosig0")
        p.wait(vm=0)
        p.v("v_readfirstlane_b32", sNon, vPl4[2])
        p.s("s_cmp_eq_u32", sNon, 0); p.br("s_cbranch_scc1", "L_getnonce")
        s.signal(0, sFo)
        p.br("s_branch", "L_str1_back")
        for tag in s.spins:
            p.label(f"L_spin_{tag}")
            if s.o.get("slp"): p.gen(f"s_sleep {s.o['slp']}", "salu")
            s.bound()
            s.flag_read(); p.wait(lg=0)
            p.v("v_readfirstlane_b32", sF, vFl)
            p.s("s_cmp_ge_u32", sF, sNeed)
            p.br("s_cbranch_scc0", f"L_spin_{tag}")
            p.br("s_branch", f"L_spun_{tag}")
        for tag, nx in s.stubs:
            p.label(f"L_stub_{tag}")
            p.gen(f"s_call_b64 {sRet}, L_rare{nx}", "salu", [sRet])
            p.br("s_branch", f"L_back_{tag}")
        for nx in range(2):
            p.label(f"L_rare{nx}")
            p.nop(10)
            s.rescale(nx, False)
            p.nop(4)
            p.gen(f"s_setpc_b64 {sRet}", "branch", [], [sRet])
        for tag, field, word in s.gspins:
            p.label(f"L_gspin_{tag}")
            s.bound()
            p.gen("s_sleep 1", "salu")
            s.poll_issue(field, word); p.wait(vm=0)
            s.poll_test()
            p.br("s_cbranch_scc0", f"L_gspin_{tag}")
            p.br("s_branch", f"L_gspun_{tag}")
        p.label("L_loader")
        p.s("s_lshl_b32", so, sNc, 8); p.s("s_sub_u32", so2, 4194304, so)
        s.srd(SRD_WO, ptr(4), so, so2)
        p.v("v_bfe_u32", t2, vLane, 2, 2); p.v("v_add_u32", t1, sKg, g); p.v("v_and_b32", t1, 3, t1); p.v("v_lshlrev_b32", t1, 6, t1)
        p.v("v_lshl_add_u32", t1, t2, 10, t1); p.v("v_lshl_add_u32", vDu[0], x4, 4, t1)
        p.v("v_xor_b32", vDu[2], 16, vDu[0])
        p.v("v_add_u32", vDu[1], 15 * 1024, vDu[0]); p.v("v_add_u32", vDu[3], 17 * 1024, vDu[2]); p.v("v_add_u32", vDu[2], 2 * 1024, vDu[2])
        if s.o.get("lind"):
            for r in vDk + vDv: p.v("v_lshlrev_b32", r, 4, vLane)
            p.v("v_and_b32", t1, 15, vLane); p.v("v_lshlrev_b32", t1, 4, t1); p.v("v_lshl_add_u32", vDw[0], g, 13, t1)
            for o in range(1, 4): p.v("v_add_u32", vDw[o], o * (32768 - 1024), vDw[0])
            p.v("v_and_b32", t1, 7, vLane); p.v("v_lshlrev_b32", t1, 4, t1); p.v("v_lshrrev_b32", t2, 3, vLane); p.v("v_lshl_add_u32", vDx[0], t2, 10, t1)
            for o in range(1, 4): p.v("v_add_u32", vDx[o], o * 7168, vDx[0])
        stamp_init()
        s.loader()
        p.label("L_k1_end")
        p.gen("s_endpgm", "branch")
        return p
vZ = V(251)

def one(fn, **o):
    k = K1(o); p = k.build(NAME + "_kernel")
    print(fn, "instrs", p.count(), "auto nops", p.nops, "over", k.over, file=sys.stderr)
    open(fn, "w").write(G1.assemble(["; @launch grid=(256,1,1) block=(256,1,1) lds=163840"], [p], [kdesc(NAME + "_kernel")]))
def full(fn, o1=None, o2=None):
    k = K1(o1); p1 = k.build("attn_kernel"); p2 = G1.build_k2("oproj_kernel", o2)
    t = G1.assemble(["; @launch kernel=attn_kernel grid=(256,1,1) block=(256,1,1) lds=163840",
                  "; @launch kernel=oproj_kernel grid=(256,1,1) block=(256,1,1) lds=147456"], [p1, p2],
                 [kdesc("attn_kernel"), kdesc("oproj_kernel", vgpr=256, accum=256)])
    open(fn, "w").write(t)
if __name__ == "__main__":
    R = dict(slp=2, fold=True)
    one("s1_n.s", norot=True, **R)
    one("s1_h.s", rot="h", **R)
    one("s1_both.s", norot=True, stamps=True, both=True, **R)
```
